```python
import torch

def _softmax(x, axis=-1):
    return torch.softmax(x, dim=axis)
def _gelu(x):
    return torch.nn.functional.gelu(x, approximate="tanh")
def _silu(x):
    return torch.nn.functional.silu(x)
def _sigmoid(x):
    return torch.sigmoid(x)
def _layernorm(x, axis=-1, eps=1e-5):
    m = x.mean(dim=axis, keepdim=True)
    v = x.var(dim=axis, keepdim=True, unbiased=False)
    return (x - m) / torch.sqrt(v + eps)
def _scatter_add(tgt, idx, src, axis=0):
    return tgt.clone().index_add_(axis, idx, src)
def _segment_sum(src, seg, n):
    out = torch.zeros((n,) + src.shape[1:], dtype=src.dtype)
    return out.index_add_(0, seg, src)
def _pad(x, pw):
    flat = tuple(v for pair in reversed(pw) for v in pair)
    return torch.nn.functional.pad(x, flat)

kernel_name = 'parallel_sum__ssm_conv_h3__mixer_channel_mlp__prompt'

def setup_inputs():

    _w = (lambda a: (lambda t: t.to(torch.bfloat16) if t.is_floating_point() else t)(torch.as_tensor(a)))
    def _A_setup():
        B, S, D = 1, 2048, 512
        ks = 4
        return {
            "q": _w((lambda *s: torch.randn(*s, dtype=torch.bfloat16) * 0.05)(B, S, D)),
            "k": _w((lambda *s: torch.randn(*s, dtype=torch.bfloat16) * 0.2)(B, S, D)),
            "v": _w((lambda *s: torch.randn(*s, dtype=torch.bfloat16) * 0.2)(B, S, D)),
            "shift_k": _w((lambda *s: torch.randn(*s, dtype=torch.bfloat16) * 0.2)(D, ks) * 0.5),
            "ssm_k": _w((lambda *s: torch.randn(*s, dtype=torch.bfloat16) * 0.8)(D, S) * (1.0 / S ** 0.5)),
            "ssm_D": _w((lambda *s: torch.randn(*s, dtype=torch.bfloat16) * 0.2)(D)),
        }
    _A_in = _A_setup()

    def _B_setup():
        B, S, D, F = 1, 2048, 512, 1792
        return {
            "x": _w((lambda *s: torch.randn(*s, dtype=torch.bfloat16) * 0.05)(B, S, D)),
            "w1": _w((lambda *s: torch.randn(*s, dtype=torch.bfloat16) * 0.8)(D, F) * (D ** -0.5)),
            "b1": _w((lambda *s: torch.randn(*s, dtype=torch.bfloat16) * 0.4)(F)),
            "w2": _w((lambda *s: torch.randn(*s, dtype=torch.bfloat16) * 0.05)(F, D) * (F ** -0.5)),
            "b2": _w((lambda *s: torch.randn(*s, dtype=torch.bfloat16) * 0.05)(D)),
        }
    _B_in = _B_setup()

    return {
        "A_q": _A_in["q"],
        "A_k": _A_in["k"],
        "A_v": _A_in["v"],
        "A_shift_k": _A_in["shift_k"],
        "A_ssm_k": _A_in["ssm_k"],
        "A_ssm_D": _A_in["ssm_D"],
        "B_x": _B_in["x"],
        "B_w1": _B_in["w1"],
        "B_b1": _B_in["b1"],
        "B_w2": _B_in["w2"],
        "B_b2": _B_in["b2"],
    }

def reference(A_q, A_k, A_v, A_shift_k, A_ssm_k, A_ssm_D, B_x, B_w1, B_b1, B_w2, B_b2):
    def _A_ref(q, k, v, shift_k, ssm_k, ssm_D):
        B, S, D = q.shape
        ks = shift_k.shape[-1]
        k_pad = _pad(k, ((0, 0), (ks - 1, 0), (0, 0)))
        k_shift = torch.zeros_like(k)
        for t in range(ks):
            k_shift = k_shift + k_pad[:, t:t + S, :] * shift_k[:, ks - 1 - t][None, None, :]
        kv = k_shift * v
        L = 2 * S
        kv_pad = _pad(kv, ((0, 0), (0, S), (0, 0)))
        kf_pad = _pad(ssm_k, ((0, 0), (0, S)))
        kv_f = (lambda x, axes=(-2,-1): torch.fft.rfft2(x.float(), dim=axes))(kv_pad[:, None, :, :], axes=(1, 2))
        kf_f = (lambda x, axes=(-2,-1): torch.fft.rfft2(x.float(), dim=axes))(kf_pad[:, None, :], axes=(1, 2))
        kf_f = (lambda x, *d: x.permute(*d))(kf_f, 1, 2, 0)
        y_f = kv_f * kf_f[None, :, :, :]
        y = (lambda x, s, axes=(-2,-1): torch.fft.irfft2(x, s=s, dim=axes).to(torch.bfloat16))(y_f, (1, L), axes=(1, 2))[:, 0, :S, :]
        y = y + kv * ssm_D[None, None, :]
        return q * y

    def _B_ref(x, w1, b1, w2, b2):
        y = _layernorm(x, axis=-1)
        h = _gelu(torch.einsum("bsd,df->bsf", y, w1) + b1)
        return torch.einsum("bsf,fd->bsd", h, w2) + b2

    x = A_q
    xn = _layernorm(x, axis=-1)
    return x + _A_ref(xn, A_k, A_v, A_shift_k, A_ssm_k, A_ssm_D) + _B_ref(xn, B_w1, B_b1, B_w2, B_b2)
```

```python
import re

REG_RE = re.compile(r'^(-?)(?:abs\()?([vas])(?:(\d+)|\[(\d+):(\d+)\])\)?$')


def regs_of(tok):
    tok = tok.strip()
    if tok in ('vcc', 'exec', 'm0', 'scc'):
        return [tok]
    if tok in ('vcc_lo', 'vcc_hi'):
        return ['vcc']
    if tok in ('exec_lo', 'exec_hi'):
        return ['exec']
    m = REG_RE.match(tok)
    if not m:
        return []
    f = m.group(2)
    if m.group(3) is not None:
        return [(f, int(m.group(3)))]
    return [(f, i) for i in range(int(m.group(4)), int(m.group(5)) + 1)]


def split_ops(s):
    out, depth, cur = [], 0, ''
    for ch in s:
        if ch in '[(':
            depth += 1
        if ch in '])':
            depth -= 1
        if ch == ',' and depth == 0:
            out.append(cur.strip())
            cur = ''
        else:
            cur += ch
    if cur.strip():
        out.append(cur.strip())
    return out


TRANS = ('v_exp_f32', 'v_log_f32', 'v_rcp_f32', 'v_rsq_f32', 'v_sqrt_f32', 'v_sin_f32', 'v_cos_f32')


class I:
    __slots__ = ('text', 'mn', 'kind', 'rd', 'wr', 'tok', 'after', 'srcc', 'srcab', 'cmt', 'wide_st', 'sdata')

    def __init__(self, text, tok=None, after=(), cmt=None):
        self.text = text.strip()
        self.tok = tok
        self.after = tuple(after) if not isinstance(after, str) else (after,)
        self.cmt = cmt
        self.srcc = []
        self.srcab = []
        self.wide_st = False
        self.sdata = []
        parts = self.text.split(None, 1)
        mn = parts[0]
        self.mn = mn
        rest = parts[1] if len(parts) > 1 else ''
        ops = split_ops(rest)
        clean = []
        mods = []
        for o in ops:
            w = o.split()
            clean.append(w[0] if w else '')
            mods += w[1:]
        ops = clean
        R = lambda idx: [r for i in idx if i < len(ops) for r in regs_of(ops[i])]
        n = len(ops)
        rd, wr = [], []
        if mn.endswith(':'):
            self.kind = 'label'
        elif mn.startswith('.'):
            self.kind = 'dir'
        elif mn.startswith('v_mfma'):
            self.kind = 'mfma'
            wr = R([0])
            self.srcab = R([1, 2])
            self.srcc = R([3])
            rd = self.srcab + self.srcc + ['exec']
        elif mn.startswith('v_'):
            self.kind = 'trans' if mn.replace('_e32', '').replace('_e64', '') in TRANS else 'valu'
            base = mn.replace('_e32', '').replace('_e64', '').replace('_dpp', '').replace('_sdwa', '')
            if base.startswith('v_cmp'):
                wr = R([0])
                rd = R(range(1, n))
            elif base in ('v_readfirstlane_b32', 'v_readlane_b32'):
                wr = R([0])
                rd = R(range(1, n))
            elif base in ('v_swap_b32', 'v_permlane16_swap_b32', 'v_permlane32_swap_b32'):
                wr = R([0, 1])
                rd = R([0, 1])
            elif base in ('v_add_co_u32', 'v_sub_co_u32', 'v_addc_co_u32', 'v_subb_co_u32'):
                wr = R([0, 1])
                rd = R(range(2, n))
            elif base in ('v_fmac_f32', 'v_dot2c_f32_bf16', 'v_writelane_b32', 'v_pk_fmac_f16'):
                wr = R([0])
                rd = R(range(0, n))
            else:
                wr = R([0])
                rd = R(range(1, n))
                if '_dpp' in mn or '_sdwa' in mn:
                    rd += R([0])
            rd = rd + ['exec']
        elif mn.startswith('ds_'):
            if mn.startswith('ds_read') or mn.startswith('ds_bpermute') or mn.startswith('ds_swizzle'):
                self.kind = 'ds_rd'
                wr = R([0])
                rd = R(range(1, n))
            else:
                self.kind = 'ds_wr'
                rd = R(range(0, n))
            rd += ['exec']
        elif mn.startswith('buffer_load') or mn.startswith('global_load'):
            if 'lds' in mods:
                self.kind = 'vm_dma'
                rd = R(range(0, n)) + ['m0']
            else:
                self.kind = 'vm_ld'
                wr = R([0])
                rd = R(range(1, n))
            rd += ['exec']
        elif mn.startswith('buffer_store') or mn.startswith('global_store') or mn.startswith('buffer_atomic') or mn.startswith('global_atomic'):
            self.kind = 'vm_st'
            rd = R(range(0, n)) + ['exec']
            if mn.endswith('x4') or mn.endswith('x3'):
                self.wide_st = True
                self.sdata = R([0]) if mn.startswith('buffer') else R([1])
        elif mn.startswith('s_load') or mn in ('s_memtime', 's_memrealtime'):
            self.kind = 'smem'
            wr = R([0])
            rd = R(range(1, n))
        elif mn == 's_waitcnt':
            self.kind = 'wait'
        elif mn == 's_barrier':
            self.kind = 'barrier'
        elif mn == 's_nop':
            self.kind = 'nop'
        elif mn.startswith('s_cbranch') or mn in ('s_branch', 's_endpgm'):
            self.kind = 'branch'
            if 'vcc' in mn:
                rd = ['vcc']
            if 'scc' in mn:
                rd = ['scc']
            if 'exec' in mn:
                rd = ['exec']
        elif mn in ('s_sleep', 's_setprio'):
            self.kind = 'salu'
        elif mn.startswith('s_cmp') or mn.startswith('s_bitcmp'):
            self.kind = 'salu'
            rd = R(range(0, n))
            wr = ['scc']
        elif mn.startswith('s_'):
            self.kind = 'salu'
            wr = R([0]) + ['scc']
            rd = R(range(1, n))
            if 'saveexec' in mn:
                wr += ['exec']
                rd += ['exec']
            if mn.startswith('s_cselect') or mn.startswith('s_addc') or mn.startswith('s_subb'):
                rd += ['scc']
            if mn in ('s_addk_i32', 's_mulk_i32'):
                rd += R([0])
        else:
            raise ValueError('unknown instr ' + text)
        self.rd = set(rd)
        self.wr = set(wr)

    def __repr__(self):
        return self.text


def is_valu(i):
    return i.kind in ('valu', 'trans')


def insert_waits(prog):
    out = []
    vm = []
    lg = []
    done_tok = set()

    def need(lst, ins):
        k = -1
        touch = ins.rd | ins.wr
        for idx, o in enumerate(lst):
            if (o.wr & touch) or (o.tok is not None and o.tok in ins.after):
                k = idx
        return k

    all_toks = set(i.tok for i in prog if i.tok is not None)
    seen = set()
    for ins in prog:
        for t in ins.after:
            assert t in all_toks, f'unknown token {t} for {ins.text}'
            assert t in seen, f'token {t} not yet issued for {ins.text}'
        if ins.kind == 'wait':
            m = re.search(r'vmcnt\((\d+)\)', ins.text)
            if m:
                n = int(m.group(1))
                vm = vm[len(vm) - n:] if n < len(vm) else vm
                if n == 0:
                    vm = []
            m = re.search(r'lgkmcnt\((\d+)\)', ins.text)
            if m:
                n = int(m.group(1))
                if n == 0:
                    lg = []
                elif not any(o.kind == 'smem' for o in lg):
                    lg = lg[len(lg) - n:] if n < len(lg) else lg
            out.append(ins)
            continue
        if ins.kind in ('label', 'dir'):
            out.append(ins)
            continue
        kv = need(vm, ins)
        kl = need(lg, ins)
        parts = []
        if kv >= 0:
            n = min(len(vm) - 1 - kv, 63)
            parts.append(f'vmcnt({n})')
            vm = vm[len(vm) - n:] if n > 0 else []
        if kl >= 0:
            if any(o.kind == 'smem' for o in lg):
                n = 0
            else:
                n = min(len(lg) - 1 - kl, 15)
            parts.append(f'lgkmcnt({n})')
            lg = lg[len(lg) - n:] if n > 0 else []
        if parts:
            out.append(I('s_waitcnt ' + ' '.join(parts)))
        if ins.mn != 's_nop' or not ins.after:
            out.append(ins)
        if ins.tok is not None:
            seen.add(ins.tok)
        if ins.kind in ('vm_ld', 'vm_dma', 'vm_st'):
            vm.append(ins)
            assert len(vm) <= 63, 'vmcnt overflow near ' + ins.text
        if ins.kind in ('ds_rd', 'ds_wr', 'smem'):
            lg.append(ins)
    return out


def merge_waits(prog):
    out = []
    for ins in prog:
        if ins.kind == 'wait' and out and out[-1].kind == 'wait':
            a, b = out[-1].text, ins.text
            d = {}
            for t in (a, b):
                for k, v in re.findall(r'(vmcnt|lgkmcnt)\((\d+)\)', t):
                    d[k] = min(d.get(k, 99), int(v))
            out[-1] = I('s_waitcnt ' + ' '.join(f'{k}({v})' for k, v in d.items()))
        else:
            out.append(ins)
    return out


def is_sgpr(r):
    return r == 'vcc' or (isinstance(r, tuple) and r[0] == 's')


def is_vgpr(r):
    return isinstance(r, tuple) and r[0] in 'va'


def mfma_passes(i):
    return 8 if '32x32' in i.mn else 4


def required_gap(p, c):
    g = 0
    pv = is_valu(p)
    cv = is_valu(c)
    if pv:
        vw = {r for r in p.wr if is_vgpr(r)}
        sw = {r for r in p.wr if is_sgpr(r)}
        if c.kind == 'mfma' and vw & c.rd:
            g = max(g, 2)
        if cv:
            if p.kind == 'trans' and c.kind != 'trans' and vw & (c.rd | c.wr):
                g = max(g, 1)
            if p.kind == 'trans' and c.kind == 'trans' and vw & c.rd:
                g = max(g, 1)
            if sw & c.rd:
                g = max(g, 4 if ('readlane' in c.mn or 'writelane' in c.mn) else 2)
            if ('readlane' in c.mn or 'readfirstlane' in c.mn) and vw & c.rd:
                g = max(g, 1)
            if ('permlane' in c.mn or '_dpp' in c.mn) and vw & c.rd:
                g = max(g, 2)
            if ('_sdwa' in p.mn or 'op_sel' in p.text and not p.mn.startswith('v_pk')) and vw & (c.rd | c.wr):
                g = max(g, 1)
            if 'dot2' in p.mn and vw & (c.rd | c.wr) and not (c.mn == p.mn):
                g = max(g, 3)
            if 'dot2' in p.mn and c.mn == p.mn and vw & c.rd:
                ops = split_ops(c.text.split(None, 1)[1])
                ab = set(regs_of(ops[1]) + regs_of(ops[2].split()[0]))
                if vw & ab:
                    g = max(g, 3)
        if p.kind == 'trans' and c.kind in ('ds_wr', 'vm_st', 'mfma') and vw & c.rd:
            g = max(g, 2)
        if 'dot2' in p.mn and c.kind in ('ds_wr', 'vm_st', 'mfma', 'ds_rd', 'vm_ld') and vw & (c.rd | c.wr):
            g = max(g, 3)
        if c.kind in ('vm_ld', 'vm_dma', 'vm_st') and sw & c.rd:
            g = max(g, 5)
        if c.kind == 'salu' and sw & c.rd:
            g = max(g, 1)
        if c.kind == 'branch' and 'vcc' in sw and 'vcc' in c.rd:
            g = max(g, 5)
    if p.kind == 'salu':
        if 'm0' in p.wr and c.kind == 'vm_dma':
            g = max(g, 1)
        if 'exec' in p.wr and ('_dpp' in c.mn or 'permlane' in c.mn or c.kind == 'mfma'):
            g = max(g, 4)
    if p.kind == 'mfma':
        ps = mfma_passes(p)
        big = {4: 8, 8: 12}[ps]
        ovl = {4: 6, 8: 10}[ps]
        war = {4: 3, 8: 7}[ps]
        if c.kind == 'mfma':
            if p.wr & set(c.srcab):
                g = max(g, big)
            if p.wr & set(c.srcc):
                if not (set(c.srcc) == p.wr and mfma_passes(c) == ps):
                    g = max(g, ovl)
            elif p.wr & c.wr:
                g = max(g, ovl)
        elif cv:
            if p.wr & (c.rd | c.wr):
                g = max(g, big)
            if set(p.srcc) & c.wr:
                g = max(g, war)
        elif c.kind in ('ds_rd', 'ds_wr', 'vm_ld', 'vm_st', 'vm_dma'):
            if p.wr & (c.rd | c.wr):
                g = max(g, big)
    if p.wide_st and set(p.sdata) & c.wr:
        g = max(g, 2)
    return g


def states(i):
    if i.kind in ('label', 'dir'):
        return 0
    if i.kind == 'nop':
        return int(i.text.split()[1], 0) + 1
    return 1


def insert_nops(prog):
    out = []
    for ins in prog:
        if ins.kind not in ('label', 'dir', 'nop', 'wait'):
            dist = 0
            need = 0
            for p in reversed(out):
                if dist >= 20:
                    break
                g = required_gap(p, ins) if p.kind not in ('label', 'dir', 'nop', 'wait') else 0
                if g - dist > need:
                    need = g - dist
                dist += states(p)
            while need > 0:
                k = min(need, 16)
                out.append(I(f's_nop {k - 1}'))
                need -= k
        out.append(ins)
    return out


def interleave(main, side, start=0, end=None):
    main = list(main)
    if end is None:
        end = len(main)
    n = end - start
    res = list(main[:start])
    k = 0
    ns = len(side)
    for idx in range(n):
        res.append(main[start + idx])
        tgt = ((idx + 1) * ns + n - 1) // n if n else ns
        tgt = min(ns, (idx + 1) * ns // n)
        while k < tgt:
            res.append(side[k])
            k += 1
    while k < ns:
        res.append(side[k])
        k += 1
    res += main[end:]
    return res


def flat(x):
    out = []
    for e in x:
        if isinstance(e, (list, tuple)):
            out += flat(e)
        elif isinstance(e, str):
            out.append(I(e))
        else:
            out.append(e)
    return out


def emit(prog):
    lines = []
    for i in prog:
        if i.kind == 'label':
            lines.append(i.text)
        else:
            t = '    ' + i.text
            if i.cmt:
                t = t.ljust(84) + '; ' + i.cmt
            lines.append(t)
    return '\n'.join(lines)
```

```python
import struct
import sys
from asmlib import I, flat, insert_waits, merge_waits, insert_nops, interleave, emit

NAME = 'parallel_sum__ssm_conv_h3__mixer_channel_mlp__prompt'
STAMPS = '--stamps' in sys.argv


def f32(x):
    return '0x%08x' % struct.unpack('<I', struct.pack('<f', x))[0]


def v(n, k=1):
    return f'v{n}' if k == 1 else f'v[{n}:{n + k - 1}]'


def a(n, k=1):
    return f'a{n}' if k == 1 else f'a[{n}:{n + k - 1}]'


def s(n, k=1):
    return f's{n}' if k == 1 else f's[{n}:{n + k - 1}]'


WS_FKV, WS_FH, WS_FY = 0x0, 0x20000, 0x40000
WS_STAMP = 0x80000
WS_KVT, WS_Y, WS_H, WS_END = 0x100000, 0x300000, 0x500000, 0xC00000
L_W1 = 0
L_KVS = 86016
L_ST = 65536
L_CX = 73728
L_B = 114688
L_HC = L_B
L_XR = L_HC + 16640
L_CS = L_XR + 9216
L_KB = L_CS + 4096 + 8192
L_GX = L_B
LDS_BYTES = 163840
assert L_KB + 9216 <= LDS_BYTES

sW = 3
sPC = 4
sN = 6
sXCD, sLOC, sTB, sFS, sJ, sCB, sROT, sT = 8, 9, 10, 11, 12, 13, 14, 15
pQ, pK, pV, pSH, pHS, pD, pBX, pW1, pB1, pW2, pB2, pOUT, pDBG, pWS = [16 + 2 * i for i in range(14)]
rX, rK, rV, rW1, rW2, rHS, rWS, rOUT = [44 + 4 * i for i in range(8)]
sKS = 76
sOW1 = 80
sLW1 = 81
sGK = 82
sBLK = 84
sOW2 = 85
sMK = 86
sD = 94
sOH = 96
sC8K = 97
sT2 = 98
sCNT = 99
sRB = 100
sTH = 101
sHL = 16
sFKV, sFH, sFY = 20, 21, 22
sOKV = 23
sOY = 24
sBP = 25
sSTAMP = [48, 50, 52, 54, 30, 34, 38, 42, 4]

vLANE = 0
vL16 = 1
vL8 = 2
vX0, vX1 = 3, 4
vWF0, vWF1, vWH = 5, 6, 7
vAB = 8
vA = 11
vW2 = 14
vB = 18
vG = 22
vF = 26
vFL = 27
vN = 28
vP = 30
vPA = 32
vT = 33
vDUM = 39
vRING = 40
vACC = 72
vXF = 128
aS, aQ, aCS, aSEL, aONE = 192, 200, 208, 224, 252

prog = []
tail = []
stamp_n = [0]


def E(*x):
    prog.extend(flat(x))


def stamp():
    if not STAMPS:
        return []
    n = stamp_n[0]
    stamp_n[0] += 1
    return [I(f's_memtime {s(sSTAMP[n], 2)}'), I('s_waitcnt lgkmcnt(0)')]


def srd(r, p, nbytes):
    return [f's_mov_b32 {s(r)}, {s(p)}', f's_and_b32 {s(r + 1)}, {s(p + 1)}, 0xffff',
            f's_mov_b32 {s(r + 2)}, {nbytes}', f's_mov_b32 {s(r + 3)}, 0x20000']


def poll_check(name, zero=False):
    cmp = f'v_cmp_eq_u64 vcc, 0, {v(vN, 2)}' if zero else f'v_cmp_ne_u64 vcc, {s(sN, 2)}, {v(vP, 2)}'
    ld = (f'global_load_dwordx2 {v(vN, 2)}, {v(vT + 5)}, {s(pDBG, 2)} sc1' if zero else
          f'buffer_load_dwordx2 {v(vP, 2)}, {v(vPA)}, {s(rWS, 4)}, 0 offen sc1')
    tail.extend(flat([
        f'Lslow_{name}:', f's_mov_b32 {s(sCNT)}, 0',
        f'Lloop_{name}:', 's_sleep 2', ld, 's_waitcnt vmcnt(0)', cmp,
        f's_add_u32 {s(sCNT)}, {s(sCNT)}, 1', f's_cmp_ge_u32 {s(sCNT)}, 20000',
        f's_cbranch_scc1 Lback_{name}', 's_nop 4', f's_cbranch_vccnz Lloop_{name}',
        f's_branch Lback_{name}']))
    return flat([cmp, f's_cbranch_vccnz Lslow_{name}', f'Lback_{name}:'])


E(f's_cmp_ge_u32 s2, 0x100', 's_cbranch_scc1 Lend',
  f's_load_dwordx16 {s(16, 16)}, s[0:1], 0', f's_load_dwordx8 {s(32, 8)}, s[0:1], 64',
  f's_load_dwordx4 {s(40, 4)}, s[0:1], 96',
  f's_getpc_b64 {s(sPC, 2)}', 'Lpc:',
  f'v_lshlrev_b32 {v(vT)}, 7, v0',
  f'v_min_u32 {v(vT)}, Lcode_end-Lpc-4, {v(vT)}',
  f'global_load_dword {v(vDUM)}, {v(vT)}, {s(sPC, 2)}',
  f'v_lshrrev_b32 {v(vT + 1)}, 6, v0',
  f'v_and_b32 v0, 63, v0',
  f'v_readfirstlane_b32 {s(sW)}, {v(vT + 1)}',
  f's_and_b32 {s(sXCD)}, s2, 7', f's_lshr_b32 {s(sLOC)}, s2, 3',
  f's_and_b32 {s(sJ)}, {s(sLOC)}, 7',
  f's_lshr_b32 {s(sT)}, {s(sLOC)}, 3',
  f's_lshr_b32 {s(sTB)}, {s(sXCD)}, 1', f's_lshl_b32 {s(sTB)}, {s(sTB)}, 2', f's_add_u32 {s(sTB)}, {s(sTB)}, {s(sT)}',
  f's_lshr_b32 {s(sCB)}, {s(sJ)}, 1',
  f's_add_u32 {s(sROT)}, {s(sT)}, {s(sCB)}', f's_and_b32 {s(sROT)}, {s(sROT)}, 3',
  f's_and_b32 {s(sT)}, {s(sXCD)}, 1',
  f's_lshl_b32 {s(sFS)}, {s(sT)}, 3', f's_add_u32 {s(sFS)}, {s(sFS)}, {s(sJ)}',
  f's_lshl_b32 {s(sT)}, {s(sT)}, 2', f's_add_u32 {s(sCB)}, {s(sCB)}, {s(sT)}',
  f's_and_b32 {s(sTH)}, {s(sJ)}, 1',
  f's_movk_i32 {s(sC8K)}, 0x2000',
  f's_mul_i32 {s(sLW1)}, {s(sW)}, 7168',
  f's_lshl_b32 {s(sRB)}, {s(sW)}, 12',
  f'v_lshlrev_b32 {v(vL16)}, 4, v0', f'v_lshlrev_b32 {v(vL8)}, 3, v0')

tL15, tG, tR4, tC4, tL3, tL7 = 240, 241, 242, 243, 244, 245
t0, t1, t2, t3 = 246, 247, 248, 249
vK0, vK1, vKT, vSHA = 250, 251, 252, 253
E(f'v_and_b32 {v(tL15)}, 15, v0', f'v_lshrrev_b32 {v(tG)}, 4, v0',
  f'v_bfe_u32 {v(tR4)}, v0, 2, 2', f'v_and_b32 {v(tC4)}, 3, v0',
  f'v_lshrrev_b32 {v(tL3)}, 3, v0', f'v_and_b32 {v(tL7)}, 7, v0')
E(f's_lshl_b32 {s(sT)}, {s(sLOC)}, 6', f's_lshl_b32 {s(sT2)}, {s(sW)}, 4', f's_add_u32 {s(sT)}, {s(sT)}, {s(sT2)}',
  f's_lshl_b32 {s(sT)}, {s(sT)}, 10', f's_lshl_b32 {s(sT2)}, {s(sXCD)}, 7', f's_add_u32 {s(sT)}, {s(sT)}, {s(sT2)}',
  f'v_lshlrev_b32 {v(t0)}, 10, {v(tL3)}', f'v_lshl_add_u32 {v(t0)}, {v(tL7)}, 4, {v(t0)}',
  f'v_add_u32 {v(vK1)}, {s(sT)}, {v(t0)}', f'v_subrev_u32 {v(vK0)}, {s(sC8K)}, {v(vK1)}',
  f's_lshl_b32 {s(sT2)}, {s(sXCD)}, 9', f'v_add_u32 {v(vSHA)}, {s(sT2)}, {v(vL8)}',
  f's_mul_i32 {s(sBLK)}, {s(sW)}, 5120', f's_add_u32 {s(sBLK)}, {s(sBLK)}, {L_KVS}')
E(srd(rK, pK, 0x200000), srd(rV, pV, 0x200000))
vSH = 254
E(f's_mov_b32 m0, {s(sBLK)}',
  I(f'buffer_load_dwordx4 {v(vK0)}, {s(rK, 4)}, 0 offen lds', tok='kv0'),
  f's_add_u32 m0, {s(sBLK)}, 1024',
  I(f'buffer_load_dwordx4 {v(vK1)}, {s(rK, 4)}, 0 offen lds', tok='kv1'),
  f's_add_u32 m0, {s(sBLK)}, 2048',
  I(f'buffer_load_dwordx4 {v(vK1)}, {s(rK, 4)}, {s(sC8K)} offen lds', tok='kv2'),
  f's_add_u32 m0, {s(sBLK)}, 3072',
  I(f'buffer_load_dwordx4 {v(vK1)}, {s(rV, 4)}, 0 offen lds', tok='kv3'),
  f's_add_u32 m0, {s(sBLK)}, 4096',
  I(f'buffer_load_dwordx4 {v(vK1)}, {s(rV, 4)}, {s(sC8K)} offen lds', tok='kv4'),
  f'global_load_dwordx2 {v(vSH, 2)}, {v(vSHA)}, {s(pSH, 2)}')
E(f's_or_b32 {s(sT)}, s2, {s(sW)}', f's_cmp_lg_u32 {s(sT)}, 0', 's_cbranch_scc1 Lnopub',
  f's_memrealtime {s(sN, 2)}', 's_waitcnt lgkmcnt(0)', f's_or_b32 {s(sT)}, {s(sN)}, 1',
  f'v_mov_b32 {v(vN)}, {s(sT)}', f'v_mov_b32 {v(vN + 1)}, {s(sN + 1)}', f'v_mov_b32 {v(t1)}, 0',
  's_mov_b64 exec, 1',
  f'global_store_dwordx2 {v(t1)}, {v(vN, 2)}, {s(pDBG, 2)} sc1',
  's_mov_b64 exec, -1', 'Lnopub:')

E(srd(rX, pQ, 0x200000), srd(rW1, pW1, 512 * 3584),
  f's_lshl_b32 {s(sT)}, {s(sTB)}, 7', f's_lshl_b32 {s(sT2)}, {s(sW)}, 5', f's_add_u32 {s(sT)}, {s(sT)}, {s(sT2)}',
  f's_lshl_b32 {s(sT)}, {s(sT)}, 10',
  f'v_lshlrev_b32 {v(t0)}, 10, {v(tL15)}', f'v_lshl_add_u32 {v(t0)}, {v(tG)}, 4, {v(t0)}',
  f'v_add_u32 {v(vX0)}, {s(sT)}, {v(t0)}', f'v_add_u32 {v(vX1)}, 0x4000, {v(vX0)}')
E(f's_mul_i32 {s(sT)}, {s(sFS)}, 224', f's_lshl_b32 {s(sT2)}, {s(sTH)}, 5', f's_add_u32 {s(sT2)}, {s(sT)}, {s(sT2)}',
  f's_mov_b32 {s(sOW2)}, 3584',
  f'v_lshrrev_b32 {v(t0)}, 2, v0', f'v_mul_lo_u32 {v(t0)}, {v(t0)}, {s(sOW2)}',
  f'v_lshrrev_b32 {v(t1)}, 5, v0', f'v_lshlrev_b32 {v(t1)}, 1, {v(t1)}', f'v_xor_b32 {v(t1)}, {v(tC4)}, {v(t1)}',
  f'v_lshl_add_u32 {v(t0)}, {v(t1)}, 4, {v(t0)}',
  f'v_add_u32 {v(vWF0)}, {s(sT2)}, {v(t0)}', f'v_add_u32 {v(vWF1)}, {16 * 3584}, {v(vWF0)}',
  f's_cmp_eq_u32 {s(sTH)}, 0', f's_cselect_b32 {s(sT2)}, 192, 0', f's_add_u32 {s(sT2)}, {s(sT)}, {s(sT2)}',
  f'v_bfe_u32 {v(t0)}, v0, 2, 3',
  f'v_lshrrev_b32 {v(t1)}, 5, v0', f'v_lshl_add_u32 {v(t0)}, {v(t1)}, 4, {v(t0)}',
  f'v_bfe_u32 {v(t1)}, v0, 1, 1', f'v_lshl_add_u32 {v(t0)}, {v(t1)}, 3, {v(t0)}',
  f'v_mul_lo_u32 {v(t0)}, {v(t0)}, {s(sOW2)}',
  f'v_and_b32 {v(t1)}, 1, v0', f'v_lshl_add_u32 {v(t0)}, {v(t1)}, 4, {v(t0)}',
  f'v_add_u32 {v(vWH)}, {s(sT2)}, {v(t0)}')


def stage_loads(st):
    items = []
    pre = [f's_add_u32 {s(sT)}, {s(sROT)}, {st}', f's_and_b32 {s(sT)}, {s(sT)}, 3',
           f's_lshl_b32 {s(sT2)}, {s(sT)}, 2', f's_add_u32 {s(sT2)}, {s(sT2)}, {s(sW)}',
           f's_mul_i32 {s(sOW1)}, {s(sT2)}, {32 * 3584}',
           f's_lshl_b32 {s(sT)}, {s(sT)}, 8']
    for p in range(4):
        pre += [f's_add_u32 {s(sT2)}, {s(sW)}, {p}', f's_and_b32 {s(sT2)}, {s(sT2)}, 3',
                f's_lshl_b32 {s(sT2)}, {s(sT2)}, 6', f's_add_u32 {s(sKS + p)}, {s(sT)}, {s(sT2)}']
    items.append(flat(pre))
    base = L_W1 + st * 28672
    for i in range(6):
        sec, hh = i >> 1, i & 1
        items.append(flat([f's_add_u32 m0, {s(sLW1)}, {base + 1024 * i - 64 * sec}',
                           I(f'buffer_load_dwordx4 {v(vWF1 if hh else vWF0)}, {s(rW1, 4)}, {s(sOW1)} offen offset:{64 * sec} lds',
                             tok=f'w1_{st}_{i}')]))
    items.append(flat([f's_add_u32 m0, {s(sLW1)}, {base + 6144}',
                       I(f'buffer_load_dwordx4 {v(vWH)}, {s(rW1, 4)}, {s(sOW1)} offen lds', tok=f'w1_{st}_6')]))
    for p in range(4):
        for tt in range(2):
            items.append(flat([f'buffer_load_dwordx4 {v(xf(st, p, tt), 4)}, {v(vX1 if tt else vX0)}, {s(rX, 4)}, {s(sKS + p)} offen']))
    return items


def xf(st, p, tt):
    return vXF + 32 * st + (p * 2 + tt) * 4


E(stage_loads(0))
E(stage_loads(1))

E(srd(rW2, pW2, 1792 * 1024), srd(rWS, pWS, WS_END), srd(rOUT, pOUT, 0x200000))
E(f's_lshl_b32 {s(sT)}, {s(sXCD)}, 6', f's_lshl_b32 {s(sT2)}, {s(sLOC)}, 1', f's_add_u32 {s(sT)}, {s(sT)}, {s(sT2)}',
  f's_lshl_b32 {s(sOW2)}, {s(sT)}, 1',
  f's_load_dword {s(sD)}, {s(pD, 2)}, {s(sOW2)}',
  f's_lshr_b32 {s(sT2)}, {s(sW)}, 1', f's_add_u32 {s(sT)}, {s(sT)}, {s(sT2)}', f's_lshl_b32 {s(sOKV)}, {s(sT)}, 12',
  f's_add_u32 {s(rHS)}, {s(pHS)}, {s(sOKV)}', f's_addc_u32 {s(rHS + 1)}, {s(pHS + 1)}, 0',
  f's_and_b32 {s(rHS + 1)}, {s(rHS + 1)}, 0xffff', f's_movk_i32 {s(rHS + 2)}, 0x1000', f's_mov_b32 {s(rHS + 3)}, 0x20000')
E(f'v_lshl_add_u32 {v(t0)}, {v(tG)}, 3, {v(tR4)}', f'v_lshlrev_b32 {v(t0)}, 6, {v(t0)}',
  f'v_lshl_add_u32 {v(t0)}, {v(tC4)}, 3, {v(t0)}',
  f'v_and_b32 {v(t1)}, 1, {v(tG)}', f'v_lshlrev_b32 {v(t1)}, 5, {v(t1)}',
  f'v_add_u32 {v(vAB)}, {v(t0)}, {v(t1)}', f'v_xor_b32 {v(vAB + 1)}, 32, {v(vAB)}',
  f'v_lshrrev_b32 {v(t2)}, 1, {v(tG)}', f'v_lshl_add_u32 {v(t2)}, {v(t2)}, 3, {v(tR4)}', f'v_lshlrev_b32 {v(t2)}, 6, {v(t2)}',
  f'v_lshl_add_u32 {v(t2)}, {v(tC4)}, 3, {v(t2)}', f'v_add_u32 {v(vAB + 2)}, {v(t2)}, {v(t1)}')
E(f's_mul_i32 {s(sT)}, {s(sW)}, {448 * 1024}', f's_lshl_b32 {s(sT2)}, {s(sCB)}, 7', f's_add_u32 {s(sT)}, {s(sT)}, {s(sT2)}',
  f'v_lshlrev_b32 {v(t0)}, 1, {v(tG)}', f'v_xor_b32 {v(t0)}, {v(tL7)}, {v(t0)}', f'v_lshlrev_b32 {v(t0)}, 4, {v(t0)}',
  f'v_lshl_add_u32 {v(t0)}, {v(tL3)}, 10, {v(t0)}', f'v_add_u32 {v(vW2)}, {s(sT)}, {v(t0)}',
  [f'v_add_u32 {v(vW2 + i)}, {7168 * i}, {v(vW2)}' for i in range(1, 4)])
E(f'v_lshl_add_u32 {v(t0)}, {v(tG)}, 2, {v(tR4)}', f'v_bfe_u32 {v(t1)}, {v(t0)}, 1, 2',
  f'v_lshlrev_b32 {v(t0)}, 7, {v(t0)}', f'v_lshl_add_u32 {v(t0)}, {v(tC4)}, 3, {v(t0)}',
  f'v_lshl_add_u32 {v(t0)}, {v(t1)}, 5, {v(t0)}', f'v_add_u32 {v(vB)}, {s(sRB)}, {v(t0)}',
  [f'v_xor_b32 {v(vB + t)}, {32 * t}, {v(vB)}' for t in range(1, 4)])
E(f's_lshr_b32 {s(sT)}, {s(sW)}, 1', f's_mul_i32 {s(sT2)}, {s(sT)}, 8320', f's_and_b32 {s(sOW2)}, {s(sW)}, 1',
  f's_lshl_b32 {s(sOW2)}, {s(sOW2)}, 8',
  f's_add_u32 {s(sT2)}, {s(sT2)}, {s(sOW2)}', f's_add_u32 {s(sT2)}, {s(sT2)}, {L_HC + 4}',
  f'v_and_b32 {v(t0)}, 1, v0', f'v_mul_u32_u24 {v(t0)}, 4160, {v(t0)}',
  f'v_lshrrev_b32 {v(t1)}, 1, {v(tL15)}', f'v_lshl_add_u32 {v(t0)}, {v(t1)}, 2, {v(t0)}',
  f'v_lshl_add_u32 {v(t0)}, {v(tG)}, 4, {v(t0)}', f'v_add_u32 {v(vG)}, {s(sT2)}, {v(t0)}',
  [f'v_add_u32 {v(vG + k)}, {1024 * k}, {v(vG)}' for k in range(1, 4)],
  f's_mul_i32 {s(sT2)}, {s(sT)}, 4608', f's_add_u32 {s(sT2)}, {s(sT2)}, {s(sOW2)}', f's_add_u32 {s(sT2)}, {s(sT2)}, {L_XR + 480}',
  f'v_lshlrev_b32 {v(t0)}, 4, {v(tG)}', f'v_lshlrev_b32 {v(t1)}, 5, {v(tL15)}', f'v_sub_u32 {v(t0)}, {v(t0)}, {v(t1)}',
  f'v_add_u32 {v(vF)}, {s(sT2)}, {v(t0)}')
E(f'v_cmp_eq_u32 vcc, 0, v0', f'v_mov_b32 {v(t0)}, 0x80000000', f'v_cndmask_b32 {v(vFL)}, {v(t0)}, 0, vcc'.replace('v_cndmask_b32', 'v_cndmask_b32_e64'),
  f'v_mov_b32 {v(t1)}, 0x3f803f80',
  [f'v_accvgpr_write_b32 {a(aONE + i)}, {v(t1)}' for i in range(4)])
for u in range(7):
    E(f'v_cmp_eq_u32 vcc, {u}, {v(tL15)}', f'v_cndmask_b32 {v(t2)}, 0, {v(t1)}, vcc',
      [f'v_accvgpr_write_b32 {a(aSEL + 4 * u + i)}, {v(t2)}' for i in range(4)])
E(f'v_lshlrev_b32 {v(t0)}, 2, {v(tG)}', f'v_sub_u32 {v(t0)}, {v(tL15)}, {v(t0)}',
  [f'v_cmp_eq_u32 {s(sMK + 2 * r, 2)}, {r}, {v(t0)}' for r in range(4)])
K1 = -2.0 * 1.4426950408889634 * 0.7978845608028654
E(f's_mov_b32 {s(sGK)}, {f32(K1)}', f's_mov_b32 {s(sGK + 1)}, {f32(K1 * 0.044715)}')
E(f'v_mov_b32 {v(t2)}, 0', f'v_mov_b32 {v(t3)}, 0',
  f's_lshr_b32 {s(sT)}, {s(sW)}, 1', f's_mul_i32 {s(sT)}, {s(sT)}, 4608', f's_add_u32 {s(sT)}, {s(sT)}, {L_XR + 4096}',
  f'v_add_u32 {v(t0)}, {s(sT)}, {v(vL8)}', f'ds_write_b64 {v(t0)}, {v(t2, 2)}',
  f's_mul_i32 {s(sT)}, {s(sW)}, 4160', f's_add_u32 {s(sT)}, {s(sT)}, {L_HC}',
  f'v_lshlrev_b32 {v(t0)}, 3, {v(tC4)}', f'v_add_u32 {v(t0)}, {s(sT)}, {v(t0)}', f'ds_write_b64 {v(t0)}, {v(t2, 2)}')
E('s_waitcnt lgkmcnt(0)',
  f's_and_b32 {s(sD + 1)}, {s(sD)}, 0xffff0000', f's_lshl_b32 {s(sD)}, {s(sD)}, 16',
  f's_add_u32 {s(sOKV)}, {s(sOKV)}, {WS_KVT}',
  f's_lshl_b32 {s(sT)}, {s(sXCD)}, 5', f's_add_u32 {s(sT)}, {s(sT)}, {s(sLOC)}',
  f's_lshl_b32 {s(sOY)}, {s(sT)}, 13', f's_add_u32 {s(sOY)}, {s(sOY)}, {WS_Y}',
  f's_lshl_b32 {s(sT2)}, {s(sW)}, 11', f's_add_u32 {s(sOY)}, {s(sOY)}, {s(sT2)}',
  f's_lshl_b32 {s(sT)}, {s(sT)}, 2', f's_add_u32 {s(sT)}, {s(sT)}, {s(sW)}', f's_lshl_b32 {s(sFKV)}, {s(sT)}, 7',
  f's_add_u32 {s(sFY)}, {s(sFKV)}, {WS_FY}',
  f's_lshl_b32 {s(sT)}, {s(sTB)}, 2', f's_add_u32 {s(sT)}, {s(sT)}, {s(sW)}',
  f's_lshl_b32 {s(sT2)}, {s(sT)}, 4', f's_add_u32 {s(sT2)}, {s(sT2)}, {s(sFS)}', f's_lshl_b32 {s(sFH)}, {s(sT2)}, 7',
  f's_add_u32 {s(sFH)}, {s(sFH)}, {WS_FH}',
  f's_lshl_b32 {s(sT2)}, {s(sT)}, 5', f's_add_u32 {s(sT2)}, {s(sT2)}, {s(sFS)}', f's_mul_i32 {s(sOH)}, {s(sT2)}, 3584',
  f's_add_u32 {s(sOH)}, {s(sOH)}, {WS_H}')
for o in range(4):
    E(f's_add_u32 {s(sT)}, {s(sW)}, {1 + o}', f's_and_b32 {s(sT)}, {s(sT)}, 3',
      f's_lshl_b32 {s(sT2)}, {s(sTB)}, 3', f's_add_u32 {s(sT)}, {s(sT)}, {s(sT2)}',
      f's_lshl_b32 {s(sT2)}, {s(sTH)}, 2', f's_add_u32 {s(sT)}, {s(sT)}, {s(sT2)}',
      f's_lshl_b32 {s(sT)}, {s(sT)}, 2', f's_add_u32 {s(sT)}, {s(sT)}, {s(sW)}',
      f's_mul_i32 {s(sHL + o)}, {s(sT)}, {4 * 3584}', f's_add_u32 {s(sHL + o)}, {s(sHL + o)}, {WS_H}')
for p in range(4):
    E(f's_add_u32 {s(sT)}, {s(sW)}, {p}', f's_and_b32 {s(sT)}, {s(sT)}, 3', f's_mul_i32 {s(sBP + p)}, {s(sT)}, 7168')

kq = 40
vq = 50
kf = 60
sf = 80
kvv = 84
vu = 100
kvp = 104
E(f'v_lshlrev_b32 {v(t0)}, 7, {v(tR4)}', f'v_lshl_add_u32 {v(t0)}, {v(tG)}, 5, {v(t0)}',
  f'v_lshl_add_u32 {v(t0)}, {v(tC4)}, 3, {v(t0)}', f'v_add_u32 {v(vKT)}, {s(sBLK)}, {v(t0)}')
E(I('s_nop 0', after=['w1_0_0']))
for q in range(5):
    E(f'ds_read_b64_tr_b16 {v(kq + 2 * q, 2)}, {v(vKT)} offset:{(4 + 4 * q) * 128}')
for q in range(4):
    E(f'ds_read_b64_tr_b16 {v(vq + 2 * q, 2)}, {v(vKT)} offset:{3072 + 512 * q}')
E(f'v_lshlrev_b32 {v(sf)}, 16, {v(vSH)}', f'v_and_b32 {v(sf + 1)}, 0xffff0000, {v(vSH)}',
  f'v_lshlrev_b32 {v(sf + 2)}, 16, {v(vSH + 1)}', f'v_and_b32 {v(sf + 3)}, 0xffff0000, {v(vSH + 1)}')
for i in range(10):
    if i > 0:
        E(f'v_lshlrev_b32 {v(kf + 2 * i)}, 16, {v(kq + i)}')
    E(f'v_and_b32 {v(kf + 2 * i + 1)}, 0xffff0000, {v(kq + i)}')
for t in range(16):
    E(f'v_mul_f32 {v(kvv + t)}, {v(kf + t + 1)}, {v(sf + 3)}')
for j in (2, 1, 0):
    for t in range(16):
        E(f'v_fmac_f32 {v(kvv + t)}, {v(kf + t + 4 - j)}, {v(sf + j)}')
for i in range(8):
    E(f'v_lshlrev_b32 {v(vu)}, 16, {v(vq + i)}', f'v_and_b32 {v(vu + 1)}, 0xffff0000, {v(vq + i)}',
      f'v_mul_f32 {v(kvv + 2 * i)}, {v(kvv + 2 * i)}, {v(vu)}', f'v_mul_f32 {v(kvv + 2 * i + 1)}, {v(kvv + 2 * i + 1)}, {v(vu + 1)}')
for d in range(8):
    E(f'v_cvt_pk_bf16_f32 {v(kvp + d)}, {v(kvv + 15 - 2 * d)}, {v(kvv + 14 - 2 * d)}')
E(f's_lshl_b32 {s(sT)}, {s(sW)}, 5', f's_sub_u32 {s(sT)}, {L_KB + 96}, {s(sT)}',
  f'v_mul_u32_u24 {v(t0)}, 144, v0', f'v_add_u32 {v(t0)}, {s(sT)}, {v(t0)}',
  f'ds_write_b128 {v(t0)}, {v(kvp, 4)}', f'ds_write_b128 {v(t0)}, {v(kvp + 4, 4)} offset:16')
E(f's_mul_i32 {s(sT)}, {s(sW)}, {16 * 144}', f's_add_u32 {s(sT)}, {s(sT)}, {L_KB}',
  f'v_mul_u32_u24 {v(t0)}, 144, {v(tL3)}', f'v_lshl_add_u32 {v(t0)}, {v(tL7)}, 4, {v(t0)}', f'v_add_u32 {v(vT)}, {s(sT)}, {v(t0)}',
  f's_lshl_b32 {s(sT)}, {s(sXCD)}, 2', f's_add_u32 {s(sT)}, {s(sT)}, {s(sW)}', f's_lshl_b32 {s(sT)}, {s(sT)}, 16',
  f's_sub_u32 {s(sT2)}, 31, {s(sLOC)}', f's_lshl_b32 {s(sT2)}, {s(sT2)}, 7', f's_add_u32 {s(sT)}, {s(sT)}, {s(sT2)}',
  f's_add_u32 {s(sT)}, {s(sT)}, {WS_KVT}',
  f'v_lshlrev_b32 {v(t0)}, 12, {v(tL3)}', f'v_lshl_add_u32 {v(t0)}, {v(tL7)}, 4, {v(t0)}', f'v_add_u32 {v(vT + 1)}, {s(sT)}, {v(t0)}',
  f'v_add_u32 {v(vT + 2)}, 0x8000, {v(vT + 1)}')
E(f's_mul_i32 {s(sT)}, {s(sFS)}, 224', f's_lshl_b32 {s(sT2)}, {s(sTH)}, 5', f's_add_u32 {s(sT2)}, {s(sT2)}, {s(sT)}',
  f'v_lshlrev_b32 {v(t0)}, 5, {v(tL15)}', f'v_add_u32 {v(t0)}, {s(sT2)}, {v(t0)}',
  f's_cmp_eq_u32 {s(sTH)}, 0', f's_cselect_b32 {s(sT2)}, 192, 0', f's_add_u32 {s(sT2)}, {s(sT2)}, {s(sT)}',
  f'v_mov_b32 {v(t1)}, {s(sT2)}', f'v_cmp_gt_u32 vcc, 6, {v(tL15)}', f'v_cndmask_b32 {v(t0)}, {v(t1)}, {v(t0)}, vcc',
  f'v_lshl_add_u32 {v(vT + 3)}, {v(tG)}, 3, {v(t0)}',
  f's_lshl_b32 {s(sT)}, {s(sXCD)}, 14', f's_lshr_b32 {s(sT2)}, {s(sLOC)}, 3', f's_lshl_b32 {s(sT2)}, {s(sT2)}, 7',
  f's_add_u32 {s(sT)}, {s(sT)}, {s(sT2)}',
  f'v_and_b32 {v(t0)}, 31, v0', f'v_lshlrev_b32 {v(t0)}, 9, {v(t0)}', f'v_add_u32 {v(vPA)}, {s(sT)}, {v(t0)}',
  f'v_mov_b32 {v(vT + 5)}, 0',
  f'v_lshlrev_b32 {v(vT + 4)}, 4, {v(tG)}')
E(stamp())


def w2_dma(k):
    b = k % 4
    it = [f's_add_u32 m0, {s(sRB)}, {16384 * b}', f's_mov_b32 {s(sOW2)}, {32768 * k}']
    res = []
    for i in range(4):
        aft = [f'w2t_{k - 4}_7'] if (k >= 4 and i == 0) else []
        it.append(I(f'buffer_load_dwordx4 {v(vW2 + i)}, {s(rW2, 4)}, {s(sOW2)} offen offset:{1024 * i} lds', tok=f'w2d_{k}_{i}', after=aft))
        res.append(flat(it))
        it = []
    return res


def w2_tr(k):
    b = k % 4
    res = []
    for h in range(2):
        for t in range(4):
            n = h * 4 + t
            res.append([I(f'ds_read_b64_tr_b16 {a(16 * k + 4 * t + 2 * h, 2)}, {v(vB + t)} offset:{16384 * b + 2048 * h}',
                          tok=f'w2t_{k}_{n}', after=[f'w2d_{k}_{2 * h + 1}'])])
    return res


w2_stream = []
w2_stream += w2_dma(3)
for k in range(14):
    w2_stream += w2_tr(k)
    if k + 4 < 14:
        w2_stream += w2_dma(k + 4)
w2_pos = [0]


def w2_take(nk):
    n = int(round(nk * 12))
    r = w2_stream[w2_pos[0]:w2_pos[0] + n]
    w2_pos[0] += len(r)
    return r


LOOK = 3


def acc1(u, tt):
    return vACC + (u * 2 + tt) * 4


def w1_reads(n):
    st, p, u = n // 28, (n // 7) % 4, n % 7
    r = vRING + 4 * (n % 8)
    out = []
    aft = []
    if u == 0:
        out += [f's_add_u32 {s(sBLK)}, {s(sBP + p)}, {L_W1 + st * 28672}']
        out += [f'v_add_u32 {v(vA + i)}, {s(sBLK)}, {v(vAB + i)}' for i in range(3)]
        if p == 0:
            aft = [f'w1_{st}_6']
        if p == 1:
            out += ['s_waitcnt lgkmcnt(0)' if st == 0 else 's_nop 0', 's_barrier']
    for h in range(2):
        if u < 6:
            out.append(I(f'ds_read_b64_tr_b16 {v(r + 2 * h, 2)}, {v(vA + (u & 1))} offset:{2048 * (u >> 1) + 256 * h}', after=aft))
        else:
            out.append(I(f'ds_read_b64_tr_b16 {v(r + 2 * h, 2)}, {v(vA + 2)} offset:{6144 + 256 * h}', after=aft))
    return flat(out)


def g1_step(n):
    st, p, u = n // 28, (n // 7) % 4, n % 7
    first = (st == 0 and p == 0)
    r = vRING + 4 * (n % 8)
    out = []
    for tt in range(2):
        c = '0' if first else v(acc1(u, tt), 4)
        out.append(f'v_mfma_f32_16x16x32_bf16 {v(acc1(u, tt), 4)}, {v(r, 4)}, {v(xf(st, p, tt), 4)}, {c}')
    if p == 0:
        c = '0' if (st == 0 and u == 0) else a(aCS, 4)
        out.append(f'v_mfma_f32_16x16x32_bf16 {a(aCS, 4)}, {v(r, 4)}, {a(aSEL + 4 * u, 4)}, {c}')
    if u in (1, 2, 3, 4):
        tt = (u - 1) & 1
        x = v(xf(st, p, tt), 4)
        if u < 3:
            c = '0' if first else a(aS + 4 * tt, 4)
            out.append(f'v_mfma_f32_16x16x32_bf16 {a(aS + 4 * tt, 4)}, {a(aONE, 4)}, {x}, {c}')
        else:
            c = '0' if first else a(aQ + 4 * tt, 4)
            out.append(f'v_mfma_f32_16x16x32_bf16 {a(aQ + 4 * tt, 4)}, {x}, {x}, {c}')
    return flat(out)


hb = 224
hreg = 128
side = {0: [], 1: [], 2: [], 3: []}
kb = 232
side0_a = [[I(f'ds_read_b128 {v(kb, 4)}, {v(vT)}')], [I(f'ds_read_b128 {v(kb + 4, 4)}, {v(vT)} offset:{8 * 144}')],
           [I(f'buffer_store_dwordx4 {v(kb, 4)}, {v(vT + 1)}, {s(rWS, 4)}, 0 offen sc1', tok='kvst0')],
           [I(f'buffer_store_dwordx4 {v(kb + 4, 4)}, {v(vT + 2)}, {s(rWS, 4)}, 0 offen sc1', tok='kvst1')],
           [I(f'global_load_dwordx2 {v(vN, 2)}, {v(vT + 5)}, {s(pDBG, 2)} sc1')]]
side[0] = side0_a + stage_loads(2)
hoff = vT
side[1] = stage_loads(3) + [
    flat([f'v_and_b32 {v(vT)}, 1, {s(sW)}'.replace(f'v_and_b32 {v(vT)}, 1, {s(sW)}', f's_and_b32 {s(sT)}, {s(sW)}, 1'),
          f's_lshl_b32 {s(sT)}, {s(sT)}, 11', f'v_add_u32 {v(vT)}, {s(sT)}, {v(vL16)}', f'v_subrev_u32 {v(vT + 1)}, 4, {v(vT)}',
          f'v_add_u32 {v(vT + 2)}, 1020, {v(vT)}']),
    [I(f'buffer_load_dwordx4 {v(hreg, 4)}, {v(vT)}, {s(rHS, 4)}, 0 offen')],
    [I(f'buffer_load_dwordx4 {v(hreg + 4, 4)}, {v(vT)}, {s(rHS, 4)}, 0 offen offset:1024')],
    [I(f'buffer_load_dword {v(hreg + 8)}, {v(vT + 1)}, {s(rHS, 4)}, 0 offen')],
    [I(f'buffer_load_dword {v(hreg + 9)}, {v(vT + 2)}, {s(rHS, 4)}, 0 offen')],
    [I(f'global_load_dwordx2 {v(hreg + 10, 2)}, {v(vT + 3)}, {s(pB1, 2)}')],
]
side[2] = [poll_check('nonce', zero=True) + flat([f'v_readfirstlane_b32 {s(sN)}, {v(vN)}', f'v_readfirstlane_b32 {s(sN + 1)}, {v(vN + 1)}']),
           [I(f'buffer_store_dwordx2 {v(vN, 2)}, {v(vFL)}, {s(rWS, 4)}, {s(sFKV)} offen sc1', after=['kvst1'])]]
side[2] += w2_dma(0) + w2_dma(1) + w2_dma(2)
he = hreg + 12
hprep = []
for b in range(2):
    src = hreg + 4 * b
    hprep.append(flat([f'v_alignbit_b32 {v(he + 4 * b)}, {v(src)}, {v(hreg + 8 + b)}, 16'] +
                      [f'v_alignbit_b32 {v(he + 4 * b + i)}, {v(src + i)}, {v(src + i - 1)}, 16' for i in range(1, 4)]))
hprep.append(flat([f's_lshr_b32 {s(sT)}, {s(sW)}, 1', f's_mul_i32 {s(sT)}, {s(sT)}, 8320', f's_add_u32 {s(sT)}, {s(sT)}, {L_HC + 32}',
                   f'v_add_u32 {v(vT + 1)}, {s(sT)}, {v(vT)}']))
hprep += [[I(f'ds_write_b128 {v(vT + 1)}, {v(he, 4)}')], [I(f'ds_write_b128 {v(vT + 1)}, {v(he + 4, 4)} offset:1024')],
          [I(f'ds_write_b128 {v(vT + 1)}, {v(hreg, 4)} offset:4160')], [I(f'ds_write_b128 {v(vT + 1)}, {v(hreg + 4, 4)} offset:{4160 + 1024}')]]
xr = 160
side[3] = ([[I(f'buffer_load_dwordx2 {v(vP, 2)}, {v(vPA)}, {s(rWS, 4)}, 0 offen sc1')]] + hprep + w2_take(4 / 12) +
           [poll_check('kv')] +
           [[I(f'buffer_load_dwordx4 {v(xr, 4)}, {v(vT)}, {s(rWS, 4)}, {s(sOKV)} offen sc1')],
            [I(f'buffer_load_dwordx4 {v(xr + 4, 4)}, {v(vT)}, {s(rWS, 4)}, {s(sOKV)} offen offset:1024 sc1')]] +
           w2_take(2))

for n in range(LOOK):
    E(w1_reads(n))
for st in range(4):
    steps = []
    for n in range(28 * st, 28 * st + 28):
        it = []
        if n + LOOK < 112:
            it += w1_reads(n + LOOK)
        it += g1_step(n)
        steps.append(it)
    E(interleave(steps, side[st], start=7 - LOOK + 1, end=28 - LOOK - 1))
E(stamp())

b1f = 168
E(f's_lshr_b32 {s(sT)}, {s(sW)}, 1', f's_mul_i32 {s(sT)}, {s(sT)}, 4608', f's_add_u32 {s(sT)}, {s(sT)}, {L_XR}',
  f'v_add_u32 {v(vT + 1)}, {s(sT)}, {v(vT)}',
  f'ds_write_b128 {v(vT + 1)}, {v(xr, 4)}', f'ds_write_b128 {v(vT + 1)}, {v(xr + 4, 4)} offset:1024',
  f's_lshl_b32 {s(sT)}, {s(sW)}, 10', f's_add_u32 {s(sT)}, {s(sT)}, {L_CS}',
  f'v_add_u32 {v(vT + 2)}, {s(sT)}, {v(vL16)}',
  f'ds_write_b128 {v(vT + 2)}, {a(aCS, 4)}',
  f'v_lshlrev_b32 {v(b1f)}, 16, {v(hreg + 10)}', f'v_and_b32 {v(b1f + 1)}, 0xffff0000, {v(hreg + 10)}',
  f'v_lshlrev_b32 {v(b1f + 2)}, 16, {v(hreg + 11)}', f'v_and_b32 {v(b1f + 3)}, 0xffff0000, {v(hreg + 11)}',
  f's_lshl_b32 {s(sT)}, {s(sW)}, 11', f's_add_u32 {s(sT)}, {s(sT)}, {L_CS + 4096}',
  f'v_and_b32 {v(vT + 3)}, 15, v0', f'v_lshlrev_b32 {v(vT + 3)}, 6, {v(vT + 3)}',
  f'v_add_u32 {v(vT + 4)}, {s(sT)}, {v(vT + 4)}',
  f'v_add_u32 {v(vT + 3)}, {v(vT + 3)}, {v(vT + 4)}',
  f'ds_write_b128 {v(vT + 3)}, {v(b1f, 4)} offset:1024',
  f'v_add_u32 {v(vT + 2)}, {L_CS}, {v(vL16)}',
  's_waitcnt lgkmcnt(0)', 's_barrier')
cx = 172
for w in range(4):
    E(f'ds_read_b128 {v(cx + 4 * w, 4)}, {v(vT + 2)} offset:{1024 * w}')
vR, vRM = 188, 192
q0 = 196
for tt in range(2):
    R, RM = vR + 2 * tt, vRM + 2 * tt
    E([f'v_accvgpr_read_b32 {v(q0 + r)}, {a(aQ + 4 * tt + r)}' for r in range(4)],
      f'v_accvgpr_read_b32 {v(q0 + 4)}, {a(aS + 4 * tt)}',
      f'v_cndmask_b32 {v(q0 + 5)}, 0, {v(q0)}, {s(sMK, 2)}',
      [f'v_cndmask_b32 {v(q0 + 5)}, {v(q0 + 5)}, {v(q0 + r)}, {s(sMK + 2 * r, 2)}' for r in range(1, 4)],
      f'v_mov_b32 {v(q0 + 6)}, {v(q0 + 5)}', f'v_permlane16_swap_b32 {v(q0 + 5)}, {v(q0 + 6)}',
      f'v_add_f32 {v(q0 + 5)}, {v(q0 + 5)}, {v(q0 + 6)}',
      f'v_mov_b32 {v(q0 + 6)}, {v(q0 + 5)}', f'v_permlane32_swap_b32 {v(q0 + 5)}, {v(q0 + 6)}',
      f'v_add_f32 {v(q0 + 5)}, {v(q0 + 5)}, {v(q0 + 6)}',
      f'v_mul_f32 {v(q0 + 8)}, {f32(1 / 512)}, {v(q0 + 4)}',
      f'v_mul_f32 {v(q0 + 5)}, {f32(1 / 512)}, {v(q0 + 5)}',
      f'v_fma_f32 {v(q0 + 5)}, -{v(q0 + 8)}, {v(q0 + 8)}, {v(q0 + 5)}',
      f'v_max_f32 {v(q0 + 5)}, 0, {v(q0 + 5)}',
      f'v_add_f32 {v(q0 + 6)}, {f32(1e-5)}, {v(q0 + 5)}', f'v_rsq_f32 {v(q0 + 9)}, {v(q0 + 6)}',
      f'v_mul_f32 {v(q0 + 5)}, {v(q0 + 5)}, {v(q0 + 9)}', f'v_mul_f32 {v(q0 + 5)}, {v(q0 + 5)}, {v(q0 + 9)}',
      f'v_add_f32 {v(q0 + 6)}, {f32(1e-5)}, {v(q0 + 5)}', f'v_rsq_f32 {v(q0 + 7)}, {v(q0 + 6)}',
      f'v_mul_f32 {v(R)}, {v(q0 + 9)}, {v(q0 + 7)}',
      f'v_mul_f32 {v(RM)}, {v(R)}, {v(q0 + 8)}', f'v_sub_f32 {v(RM)}, 0, {v(RM)}',
      f's_lshl_b32 {s(sT)}, {s(sW)}, 8', f's_add_u32 {s(sT)}, {s(sT)}, {L_ST + 128 * tt}',
      f'v_and_b32 {v(q0 + 6)}, 15, v0', f'v_lshlrev_b32 {v(q0 + 6)}, 3, {v(q0 + 6)}', f'v_add_u32 {v(q0 + 6)}, {s(sT)}, {v(q0 + 6)}',
      f'ds_write_b64 {v(q0 + 6)}, {v(q0 + 8, 2)}')
E([f'v_pk_add_f32 {v(cx + i, 2)}, {v(cx + i, 2)}, {v(cx + 4 + i, 2)}' for i in (0, 2)],
  [f'v_pk_add_f32 {v(cx + 8 + i, 2)}, {v(cx + 8 + i, 2)}, {v(cx + 12 + i, 2)}' for i in (0, 2)],
  [f'v_pk_add_f32 {v(cx + i, 2)}, {v(cx + i, 2)}, {v(cx + 8 + i, 2)}' for i in (0, 2)],
  f'ds_write_b128 {v(vT + 3)}, {v(cx, 4)}')
vCSr, vB1r = 128, 200
for u in range(7):
    E(f'ds_read_b128 {v(vCSr + 4 * u, 4)}, {v(vT + 4)} offset:{64 * u}',
      f'ds_read_b128 {v(vB1r + 4 * u, 4)}, {v(vT + 4)} offset:{1024 + 64 * u}')

gt = 40
gel = []
po = [64, 68, 156, 160]
pi = 0


def gelu_pair(accr, csr, b1r, R, RM, dst, tset):
    t = gt + 8 * tset
    return [
        f'v_pk_fma_f32 {v(t, 2)}, {v(csr, 2)}, {v(RM, 2)}, {v(b1r, 2)} op_sel_hi:[1,0,1]',
        f'v_pk_fma_f32 {v(t, 2)}, {v(accr, 2)}, {v(R, 2)}, {v(t, 2)} op_sel_hi:[1,0,1]',
        f'v_pk_mul_f32 {v(t + 2, 2)}, {v(t, 2)}, {v(t, 2)}',
        f'v_pk_fma_f32 {v(t + 2, 2)}, {v(t + 2, 2)}, {s(sGK, 2)}, {s(sGK, 2)} op_sel:[0,1,0] op_sel_hi:[1,1,0]',
        f'v_pk_mul_f32 {v(t + 2, 2)}, {v(t + 2, 2)}, {v(t, 2)}',
        f'v_exp_f32 {v(t + 4)}, {v(t + 2)}', f'v_exp_f32 {v(t + 5)}, {v(t + 3)}',
        f'v_pk_add_f32 {v(t + 4, 2)}, {v(t + 4, 2)}, 1.0 op_sel_hi:[1,0]',
        f'v_rcp_f32 {v(t + 6)}, {v(t + 4)}', f'v_rcp_f32 {v(t + 7)}, {v(t + 5)}',
        f'v_pk_mul_f32 {v(t + 6, 2)}, {v(t + 6, 2)}, {v(t, 2)}',
        f'v_cvt_pk_bf16_f32 {v(dst)}, {v(t + 6)}, {v(t + 7)}']


def zip2(x, y):
    out = []
    for p, q in zip(x, y):
        out += [p, q]
    return out


hst = []
for tt in range(2):
    for p in range(4):
        dst = po[pi % 4]
        pi += 1
        us = [2 * p, 2 * p + 1] if p < 3 else [6]
        for k, u in enumerate(us):
            A = gelu_pair(acc1(u, tt), vCSr + 4 * u, vB1r + 4 * u, vR + 2 * tt, vRM + 2 * tt, dst + 2 * k, 0)
            B = gelu_pair(acc1(u, tt) + 2, vCSr + 4 * u + 2, vB1r + 4 * u + 2, vR + 2 * tt, vRM + 2 * tt, dst + 2 * k + 1, 1)
            gel += [[I(x)] for x in zip2(A, B)]
        if tt == 1 and p == 0:
            gel.append(flat([f's_add_u32 {s(sOH)}, {s(sOH)}, {16 * 3584}']))
        if p < 3:
            gel.append([I(f'buffer_store_dwordx4 {v(dst, 4)}, {v(vL16)}, {s(rWS, 4)}, {s(sOH)} offen offset:{1024 * p} sc1', tok=f'hst{tt}{p}')])
        else:
            gel.append([I(f'buffer_store_dwordx2 {v(dst, 2)}, {v(vL8)}, {s(rWS, 4)}, {s(sOH)} offen offset:3072 sc1', tok=f'hst{tt}{p}')])
E(interleave(gel, w2_take(4)))
E(stamp())

cacc = 40
GF = [72, 136]
vH = [200, 72, 128, 200]


def conv_reads(cl):
    base = GF[cl & 1]
    out = []
    for i in range(8):
        g = base + 4 * i
        o = 16 * cl + 128 * (i & 1)
        out.append([I(f'ds_read2_b32 {v(g, 2)}, {v(vG + (i >> 1))} offset0:{o} offset1:{o + 1}')])
        out.append([I(f'ds_read2_b32 {v(g + 2, 2)}, {v(vG + (i >> 1))} offset0:{o + 2} offset1:{o + 3}')])
        out.append([I(f'ds_read_b128 {v(base + 32 + 4 * i, 4)}, {v(vF)} offset:{3584 - 512 * i + 64 * cl}')])
    return out


def conv_mfma(cl):
    base = GF[cl & 1]
    out = []
    seen = set()
    pairs = sorted([(x, y) for x in range(8) for y in range(8) if x + y <= 7], key=lambda t: (max(t), t[0] + t[1]))
    for (x, y) in pairs:
        d = v(cacc + 4 * (x + y), 4)
        c = d
        if cl == 0 and (x + y) not in seen:
            c = '0'
            seen.add(x + y)
        out.append([I(f'v_mfma_f32_16x16x32_bf16 {d}, {v(base + 4 * x, 4)}, {v(base + 32 + 4 * y, 4)}, {c}')])
    return out


def h_loads(o):
    out = []
    for kap in range(14):
        aa, kk = kap // 7, kap % 7
        r = vH[o] + 4 * kap
        if kk == 3:
            for hf in range(2):
                off = (2 * aa + hf) * 3584 + 3072
                out.append(hload(v(r + 2 * hf, 2), 'x2', vL8, o, off))
        else:
            fsl = 2 * aa + (1 if kk > 3 else 0)
            p = kk if kk < 3 else kk - 4
            out.append(hload(v(r, 4), 'x4', vL16, o, fsl * 3584 + p * 1024))
    return out


def hload(dst, w, vo, o, off):
    hi, lo = off // 3584 * 3584, off % 3584
    if hi == 0:
        return [I(f'buffer_load_dword{w} {dst}, {v(vo)}, {s(rWS, 4)}, {s(sHL + o)} offen offset:{lo} sc1')]
    return flat([f's_add_u32 {s(sT2)}, {s(sHL + o)}, {hi}',
                 f'buffer_load_dword{w} {dst}, {v(vo)}, {s(rWS, 4)}, {s(sT2)} offen offset:{lo} sc1'])


E(conv_reads(0))
hflag = [I(f'buffer_store_dwordx2 {v(vN, 2)}, {v(vFL)}, {s(rWS, 4)}, {s(sFH)} offen sc1', after=['hst13'])]
hpoll_addr = flat([f's_lshl_b32 {s(sT)}, {s(sTB)}, 2', f's_lshl_b32 {s(sT2)}, {s(sTH)}, 1', f's_add_u32 {s(sT)}, {s(sT)}, {s(sT2)}',
                   f's_lshl_b32 {s(sT)}, {s(sT)}, 2', f's_add_u32 {s(sT)}, {s(sT)}, {s(sW)}', f's_lshl_b32 {s(sT)}, {s(sT)}, 9',
                   f's_add_u32 {s(sT)}, {s(sT)}, {WS_FH}',
                   f'v_bfe_u32 {v(vT)}, v0, 2, 1', f'v_lshlrev_b32 {v(vT)}, 11, {v(vT)}',
                   f'v_and_b32 {v(vT + 1)}, 3, v0', f'v_lshl_add_u32 {v(vT)}, {v(vT + 1)}, 7, {v(vT)}',
                   f'v_add_u32 {v(vPA)}, {s(sT)}, {v(vT)}'])
for cl in range(4):
    sd = conv_reads(cl + 1) if cl < 3 else []
    m = interleave(conv_mfma(cl), sd, end=30)
    extra = []
    if cl == 0:
        extra = w2_take(1) + [hflag] + w2_take(1.5)
    if cl == 1:
        extra = w2_take(2.5) + [hpoll_addr]
    if cl == 2:
        extra = w2_take(100) + [[I(f'buffer_load_dwordx2 {v(vP, 2)}, {v(vPA)}, {s(rWS, 4)}, 0 offen sc1')]]
    if cl == 3:
        extra = [poll_check('h')] + h_loads(0)
    E(interleave(m, extra, start=(8 if cl == 3 else 0)))
E(stamp())

kx = 72
E(f's_mul_i32 {s(sT)}, {s(sW)}, {8 * 1280}', f's_add_u32 {s(sT)}, {s(sT)}, {L_CX}',
  f'v_lshrrev_b32 {v(vT)}, 4, v0', f'v_lshlrev_b32 {v(vT)}, 6, {v(vT)}', f'v_add_u32 {v(vT)}, {v(vT)}, {v(vL16)}',
  f'v_add_u32 {v(vT)}, {s(sT)}, {v(vT)}',
  f's_lshl_b32 {s(sT)}, {s(sW)}, 10', f's_sub_u32 {s(sT)}, {L_XR + 4088 - 512}, {s(sT)}',
  f'v_sub_u32 {v(vT + 1)}, {s(sT)}, {v(vL8)}')
for i in range(2):
    for ch in range(2):
        E(f'ds_read_b64 {v(kx + 4 * i + 2 * ch, 2)}, {v(vT + 1)} offset:{512 * (1 - i) + 4608 * ch}')
for cb_ in range(8):
    E(f'ds_write_b128 {v(vT)}, {v(cacc + 4 * cb_, 4)} offset:{1280 * cb_}')
E(f's_mul_i32 {s(sT)}, {s(sW)}, {2 * 1280}', f's_add_u32 {s(sT)}, {s(sT)}, {L_CX}',
  f'v_and_b32 {v(vT + 2)}, 3, v0', f'v_mul_u32_u24 {v(vT + 2)}, 320, {v(vT + 2)}',
  f'v_lshrrev_b32 {v(vT + 3)}, 2, v0', f'v_lshl_add_u32 {v(vT + 2)}, {v(vT + 3)}, 4, {v(vT + 2)}',
  f'v_add_u32 {v(vT + 2)}, {s(sT)}, {v(vT + 2)}',
  's_waitcnt lgkmcnt(0)', 's_barrier')
cr = 80
for i in range(2):
    for sw in range(4):
        E(f'ds_read_b128 {v(cr + 16 * i + 4 * sw, 4)}, {v(vT + 2)} offset:{sw * 8 * 1280 + i * 1280}')
ku = 112
yo = 116
for i in range(2):
    for ch in range(2):
        A, B = cr + 16 * i + 8 * ch, cr + 16 * i + 8 * ch + 4
        k = kx + 4 * i + 2 * ch
        E(f'v_and_b32 {v(ku)}, 0xffff0000, {v(k + 1)}', f'v_lshlrev_b32 {v(ku + 1)}, 16, {v(k + 1)}',
          f'v_and_b32 {v(ku + 2)}, 0xffff0000, {v(k)}', f'v_lshlrev_b32 {v(ku + 3)}, 16, {v(k)}',
          f'v_pk_add_f32 {v(A, 2)}, {v(A, 2)}, {v(B, 2)}', f'v_pk_add_f32 {v(A + 2, 2)}, {v(A + 2, 2)}, {v(B + 2, 2)}',
          [f'v_fmac_f32 {v(A + e)}, {s(sD + ch)}, {v(ku + e)}' for e in range(4)],
          f'v_cvt_pk_bf16_f32 {v(yo + 4 * i + 2 * ch)}, {v(A)}, {v(A + 1)}',
          f'v_cvt_pk_bf16_f32 {v(yo + 4 * i + 2 * ch + 1)}, {v(A + 2)}, {v(A + 3)}')
    E(I(f'buffer_store_dwordx4 {v(yo + 4 * i, 4)}, {v(vL16)}, {s(rWS, 4)}, {s(sOY)} offen offset:{1024 * i} sc1', tok=f'yst{i}'))
E(stamp())

g2acc = [40, 56]


def g2_mfma(o):
    out = []
    acc = g2acc[o & 1]
    for kap in range(14):
        for t in range(4):
            d = v(acc + 4 * t, 4)
            c = '0' if kap == 0 else d
            out.append([I(f'v_mfma_f32_16x16x32_bf16 {d}, {a(16 * kap + 4 * t, 4)}, {v(vH[o] + 4 * kap, 4)}, {c}')])
    return out


def g2_write(o):
    acc = g2acc[o & 1]
    pre = flat([f's_add_u32 {s(sT)}, {s(sW)}, {1 + o}', f's_and_b32 {s(sT)}, {s(sT)}, 3', f's_mul_i32 {s(sT)}, {s(sT)}, 12288',
                f's_add_u32 {s(sT)}, {s(sT)}, {L_GX + 4096 * o}', f'v_add_u32 {v(vT)}, {s(sT)}, {v(vL16)}'])
    return [pre] + [[I(f'ds_write_b128 {v(vT)}, {v(acc + 4 * t, 4)} offset:{1024 * t}')] for t in range(4)]


ex, eb, ey = 184, 192, 124
yflag = [I(f'buffer_store_dwordx2 {v(vN, 2)}, {v(vFL)}, {s(rWS, 4)}, {s(sFY)} offen sc1', after=['yst1'])]
vOA = vT + 4
ep_addr = flat([f's_lshl_b32 {s(sT)}, {s(sTB)}, 3', f's_lshl_b32 {s(sCNT)}, {s(sTH)}, 2', f's_add_u32 {s(sT)}, {s(sT)}, {s(sCNT)}',
                f's_add_u32 {s(sT)}, {s(sT)}, {s(sW)}', f's_lshl_b32 {s(sT)}, {s(sT)}, 14',
                f's_lshl_b32 {s(sCNT)}, {s(sCB)}, 7', f's_add_u32 {s(sT)}, {s(sT)}, {s(sCNT)}',
                f'v_lshrrev_b32 {v(vT + 5)}, 4, v0', f'v_lshlrev_b32 {v(vT + 5)}, 3, {v(vT + 5)}',
                f'v_and_b32 {v(vOA)}, 15, v0', f'v_lshl_add_u32 {v(vOA)}, {v(vOA)}, 10, {v(vT + 5)}',
                f'v_add_u32 {v(vOA)}, {s(sT)}, {v(vOA)}',
                f'v_add_u32 {v(vT + 5)}, {s(sCNT)}, {v(vT + 5)}'])
ep_loads = [[I(f'buffer_load_dwordx2 {v(ex + 2 * t, 2)}, {v(vOA)}, {s(rX, 4)}, 0 offen offset:{32 * t}')] for t in range(4)]
ep_loads += [[I(f'global_load_dwordx2 {v(eb + 2 * t, 2)}, {v(vT + 5)}, {s(pB2, 2)} offset:{32 * t}')] for t in range(4)]
ypoll_addr = flat([f's_lshl_b32 {s(sT)}, {s(sCB)}, 14', f's_lshr_b32 {s(sCNT)}, {s(sTB)}, 2', f's_lshl_b32 {s(sCNT)}, {s(sCNT)}, 7',
                   f's_add_u32 {s(sT)}, {s(sT)}, {s(sCNT)}', f's_add_u32 {s(sT)}, {s(sT)}, {WS_FY}',
                   f'v_and_b32 {v(vPA)}, 31, v0', f'v_lshlrev_b32 {v(vPA)}, 9, {v(vPA)}', f'v_add_u32 {v(vPA)}, {s(sT)}, {v(vPA)}'])
yl_addr = flat([f's_lshl_b32 {s(sT)}, {s(sTB)}, 3', f's_lshl_b32 {s(sCNT)}, {s(sTH)}, 2', f's_add_u32 {s(sT)}, {s(sT)}, {s(sCNT)}',
                f's_add_u32 {s(sT)}, {s(sT)}, {s(sW)}', f's_lshl_b32 {s(sT)}, {s(sT)}, 6',
                f's_lshl_b32 {s(sCNT)}, {s(sCB)}, 18', f's_add_u32 {s(sT)}, {s(sT)}, {s(sCNT)}', f's_add_u32 {s(sOY)}, {s(sT)}, {WS_Y}',
                f's_add_u32 {s(sOKV)}, {s(sOY)}, {16 * 8192}',
                f'v_lshrrev_b32 {v(vT + 1)}, 2, v0', f'v_lshlrev_b32 {v(vT + 1)}, 13, {v(vT + 1)}',
                f'v_and_b32 {v(vT + 2)}, 3, v0', f'v_lshl_add_u32 {v(vT + 1)}, {v(vT + 2)}, 4, {v(vT + 1)}'])

E(interleave(g2_mfma(0), h_loads(1)[:6] + [yflag] + h_loads(1)[6:] + h_loads(2)))
E(interleave(g2_mfma(1), g2_write(0) + [ep_addr] + ep_loads + h_loads(3) + [ypoll_addr] +
             [[I(f'buffer_load_dwordx2 {v(vP, 2)}, {v(vPA)}, {s(rWS, 4)}, 0 offen sc1')]], start=3))
yr = 72
E(interleave(g2_mfma(2), g2_write(1) + [yl_addr] + [[], [], [], []] + [poll_check('y')] +
             [[I(f'buffer_load_dwordx4 {v(yr, 4)}, {v(vT + 1)}, {s(rWS, 4)}, {s(sOY)} offen sc1')],
              [I(f'buffer_load_dwordx4 {v(yr + 4, 4)}, {v(vT + 1)}, {s(rWS, 4)}, {s(sOKV)} offen sc1')]], start=3))
E(g2_write(2))
E('s_waitcnt lgkmcnt(0)', 's_barrier')
E(stamp())
pr = 128
sm = 80
yt = 96
st_ = 104
tu = 106
sd = [flat([f's_mul_i32 {s(sT)}, {s(sW)}, 12288', f's_add_u32 {s(sT)}, {s(sT)}, {L_GX}', f'v_add_u32 {v(vT)}, {s(sT)}, {v(vL16)}'])]
for i in range(12):
    sd.append([I(f'ds_read_b128 {v(pr + 4 * i, 4)}, {v(vT)} offset:{1024 * i}')])
sd.append(flat([f's_lshl_b32 {s(sT)}, {s(sTH)}, 9', f's_lshl_b32 {s(sCNT)}, {s(sW)}, 7', f's_add_u32 {s(sT)}, {s(sT)}, {s(sCNT)}',
                f's_add_u32 {s(sT)}, {s(sT)}, {L_ST}',
                f'v_and_b32 {v(vT + 2)}, 15, v0', f'v_lshlrev_b32 {v(vT + 2)}, 3, {v(vT + 2)}', f'v_add_u32 {v(vT + 2)}, {s(sT)}, {v(vT + 2)}',
                f'ds_read_b64 {v(st_, 2)}, {v(vT + 2)}']))
sd.append(flat([f'v_add_u32 {v(vT + 2)}, {s(sRB)}, {v(vL16)}',
                f'ds_write_b128 {v(vT + 2)}, {v(yr, 4)}', f'ds_write_b128 {v(vT + 2)}, {v(yr + 4, 4)} offset:1024']))
sd.append(flat([f'v_lshrrev_b32 {v(vT + 3)}, 3, v0', f'v_lshlrev_b32 {v(vT + 3)}, 6, {v(vT + 3)}',
                f'v_and_b32 {v(vT + 2)}, 3, v0', f'v_lshl_add_u32 {v(vT + 3)}, {v(vT + 2)}, 4, {v(vT + 3)}',
                f'v_bfe_u32 {v(vT + 2)}, v0, 2, 1', f'v_lshl_add_u32 {v(vT + 3)}, {v(vT + 2)}, 3, {v(vT + 3)}',
                f'v_add_u32 {v(vT + 3)}, {s(sRB)}, {v(vT + 3)}']))
for t in range(4):
    sd.append([I(f'ds_read_b64_tr_b16 {v(yt + 2 * t, 2)}, {v(vT + 3)} offset:{512 * t}')])
for i in range(16):
    sd.append([I(f'v_add_f32 {v(sm + i)}, {v(pr + i)}, {v(pr + 16 + i)}')])
    sd.append([I(f'v_add_f32 {v(sm + i)}, {v(sm + i)}, {v(pr + 32 + i)}')])
for t in range(4):
    for e in range(4):
        rx, rb, ry = ex + 2 * t + (e >> 1), eb + 2 * t + (e >> 1), yt + 2 * t + (e >> 1)
        un = (lambda d, r: f'v_and_b32 {v(d)}, 0xffff0000, {v(r)}') if e & 1 else (lambda d, r: f'v_lshlrev_b32 {v(d)}, 16, {v(r)}')
        o_ = sm + 4 * t + e
        b = tu + 4 * (e & 1)
        for x in [un(b, rx), un(b + 1, rb), un(b + 2, ry),
                  f'v_add_f32 {v(o_)}, {v(o_)}, {v(b)}', f'v_sub_f32 {v(b)}, {v(b)}, {v(st_)}',
                  f'v_add_f32 {v(o_)}, {v(o_)}, {v(b + 1)}', f'v_mul_f32 {v(b)}, {v(b)}, {v(st_ + 1)}',
                  f'v_fmac_f32 {v(o_)}, {v(b)}, {v(b + 2)}']:
            sd.append([I(x)])
E(interleave(g2_mfma(3), sd))
acc = g2acc[1]
for t in range(4):
    E(f'v_pk_add_f32 {v(sm + 4 * t, 2)}, {v(sm + 4 * t, 2)}, {v(acc + 4 * t, 2)}',
      f'v_pk_add_f32 {v(sm + 4 * t + 2, 2)}, {v(sm + 4 * t + 2, 2)}, {v(acc + 4 * t + 2, 2)}',
      f'v_cvt_pk_bf16_f32 {v(yt + 2 * t)}, {v(sm + 4 * t)}, {v(sm + 4 * t + 1)}',
      f'v_cvt_pk_bf16_f32 {v(yt + 2 * t + 1)}, {v(sm + 4 * t + 2)}, {v(sm + 4 * t + 3)}',
      f'buffer_store_dwordx2 {v(yt + 2 * t, 2)}, {v(vOA)}, {s(rOUT, 4)}, 0 offen offset:{32 * t}')
if STAMPS:
    E('s_waitcnt vmcnt(0)')
    E(stamp())
    E(f's_lshl_b32 {s(sT)}, s2, 2', f's_add_u32 {s(sT)}, {s(sT)}, {s(sW)}', f's_lshl_b32 {s(sT)}, {s(sT)}, 6',
      f's_add_u32 {s(sT)}, {s(sT)}, {WS_STAMP}')
    for n in range(stamp_n[0]):
        E(f'v_mov_b32 {v(40)}, {s(sSTAMP[n])}',
          f'buffer_store_dword {v(40)}, {v(vFL)}, {s(rWS, 4)}, {s(sT)} offen offset:{4 * n}', 's_nop 1')
E('Lend:', 's_endpgm')

assert w2_pos[0] == len(w2_stream)
main = insert_nops(merge_waits(insert_waits(prog)))
tl = insert_nops(tail)

HEADER = open('cdna_kernels/%s.s.ref' % NAME).read().split('; Override launch')[0]
out = HEADER
out += f'; @launch grid=(256,1,1) block=(256,1,1) lds={LDS_BYTES}\n'
out += f'''.amdgcn_target "amdgcn-amd-amdhsa--gfx950"
.text
.globl {NAME}_kernel
.p2align 8
.type {NAME}_kernel,@function
{NAME}_kernel:
'''
out += emit(main) + '\n' + emit(tl) + '\nLcode_end:\n    s_endpgm\n'
out += f'''.section .rodata,"a"
.p2align 6
.amdhsa_kernel {NAME}_kernel
  .amdhsa_next_free_vgpr 512
  .amdhsa_next_free_sgpr 102
  .amdhsa_accum_offset 256
  .amdhsa_group_segment_fixed_size 0
  .amdhsa_kernarg_size 112
  .amdhsa_user_sgpr_count 2
  .amdhsa_user_sgpr_kernarg_segment_ptr 1
  .amdhsa_system_sgpr_workgroup_id_x 1
.end_amdhsa_kernel
'''
dst = [x for x in sys.argv[1:] if not x.startswith('--')]
path = dst[0] if dst else f'cdna_kernels/{NAME}.s'
open(path, 'w').write(out)
from collections import Counter
c = Counter(i.kind for i in main)
print(path, dict(c), 'nop states', sum(int(i.text.split()[1]) + 1 for i in main if i.kind == 'nop'))
```

```python
import struct
import sys
from asmlib import I, flat, insert_waits, merge_waits, insert_nops, interleave, emit

NAME = 'parallel_sum__ssm_conv_h3__mixer_channel_mlp__prompt'
STAMPS = '--stamps' in sys.argv


def f32(x):
    return '0x%08x' % struct.unpack('<I', struct.pack('<f', x))[0]


def v(n, k=1):
    return f'v{n}' if k == 1 else f'v[{n}:{n + k - 1}]'


def a(n, k=1):
    return f'a{n}' if k == 1 else f'a[{n}:{n + k - 1}]'


def s(n, k=1):
    return f's{n}' if k == 1 else f's[{n}:{n + k - 1}]'


WS_FKV, WS_FH, WS_FY, WS_STAT = 0x0, 0x20000, 0x40000, 0x60000
WS_STAMP = 0x80000
WS_KVT, WS_Y, WS_H, WS_END = 0x100000, 0x300000, 0x500000, 0xC00000
L_W1 = 0
L_KVS = 86016
L_KB = L_KVS + 20480
L_EP = 65536
L_CX = 73728
L_B = 114688
L_XS = L_B
L_HC = L_B
L_XR = L_HC + 16640
L_CS = L_XR + 9216
L_GX = L_B
LDS_BYTES = 163840

sW = 3
sPC = 4
sN = 6
sXCD, sLOC, sTB, sFS, sJ, sCB, sSIG, sT = 8, 9, 10, 11, 12, 13, 14, 15
pQ, pK, pV, pSH, pHS, pD, pBX, pW1, pB1, pW2, pB2, pOUT, pDBG, pWS = [16 + 2 * i for i in range(14)]
rX, rK, rV, rW1, rW2, rHS, rWS, rOUT = [44 + 4 * i for i in range(8)]
sOX = 76
sW1W = 77
sXH = 78
sXB = 79
sOW1 = 80
sLW1 = 81
sGK = 82
sBLK = 84
sOW2 = 85
sSIGX = 86
sOST = 87
sONE = 88
sM2 = 90
sST = 92
sD = 94
sOH = 96
sC8K = 97
sT2 = 98
sCNT = 99
sRB = 100
sTH = 101
sHL = 48
sFKV, sFH, sFY, sOKV = 52, 53, 54, 55
sOY = 28
sTILE = 29
sBP = 16

vL16, vL8 = 1, 2
vXD = 3
vXR = 7
vWF = 9
vAB = 16
vA = 19
vW2 = 22
vB = 26
vG = 30
vF = 34
vFL = 35
vN = 36
vP = 38
vPA = 40
vSTMP = 41
vDUM = 42
vT = 44
vRING = 56
vACC = 88
vXF = 144
aCS, aSEL = 208, 224

prog = []
tail = []
stamp_n = [0]
stamp_names = []


def E(*x):
    prog.extend(flat(x))


def stamp(name):
    if not STAMPS:
        return []
    n = stamp_n[0]
    stamp_n[0] += 1
    stamp_names.append(name)
    return flat([f's_memtime {s(sST, 2)}', 's_waitcnt lgkmcnt(0)', f'v_writelane_b32 {v(vSTMP)}, {s(sST)}, {n}'])


def srd(r, p, nbytes):
    return [f's_mov_b32 {s(r)}, {s(p)}', f's_and_b32 {s(r + 1)}, {s(p + 1)}, 0xffff',
            f's_mov_b32 {s(r + 2)}, {nbytes}', f's_mov_b32 {s(r + 3)}, 0x20000']


slow_n = [0]


def poll_check(name, cmp, loads):
    idx = slow_n[0]
    slow_n[0] += 1
    tail.extend(flat([
        f'Lslow_{name}:', f's_mov_b32 {s(sCNT)}, 0',
        f'Lloop_{name}:', 's_sleep 1', loads, 's_waitcnt vmcnt(0)', cmp,
        f's_add_u32 {s(sCNT)}, {s(sCNT)}, 1',
        ([f'v_writelane_b32 {v(vSTMP)}, {s(sCNT)}, {48 + idx}'] if STAMPS else []),
        f's_cmp_ge_u32 {s(sCNT)}, 20000',
        f's_cbranch_scc1 Lback_{name}', 's_nop 4', f's_cbranch_vccnz Lloop_{name}',
        f's_branch Lback_{name}']))
    return flat([cmp, f's_cbranch_vccnz Lslow_{name}', f'Lback_{name}:'])


POLL_LD = f'buffer_load_dwordx2 {v(vP, 2)}, {v(vPA)}, {s(rWS, 4)}, 0 offen sc1'
POLL_CMP = f'v_cmp_ne_u64 vcc, {s(sN, 2)}, {v(vP, 2)}'

tL15, tG, tR4, tC4, tL3, tL7 = 240, 241, 242, 243, 244, 245
t0, t1, t2, t3 = 246, 247, 248, 249
vK0, vK1, vKT, vSHA = 250, 251, 252, 253
vSH = 254
E(f's_cmp_ge_u32 s2, 0x100', 's_cbranch_scc1 Lend')
E(f's_load_dwordx16 {s(16, 16)}, s[0:1], 0', f's_load_dwordx8 {s(32, 8)}, s[0:1], 64',
  f's_load_dwordx4 {s(40, 4)}, s[0:1], 96')
if STAMPS:
    E(f'v_mov_b32 {v(vSTMP)}, 0', f's_memrealtime {s(sST, 2)}', 's_waitcnt lgkmcnt(0)', f'v_writelane_b32 {v(vSTMP)}, {s(sST)}, 62')
E(stamp('start'))
E(f'v_lshrrev_b32 {v(t0)}, 6, v0', f'v_lshlrev_b32 {v(vDUM)}, 7, v0',
  f'v_readfirstlane_b32 {s(sW)}, {v(t0)}',
  f'v_and_b32 v0, 63, v0',
  f's_and_b32 {s(sXCD)}, s2, 7', f's_lshr_b32 {s(sLOC)}, s2, 3',
  f'v_lshrrev_b32 {v(tL3)}, 3, v0', f'v_and_b32 {v(tL7)}, 7, v0',
  f'v_lshlrev_b32 {v(vL16)}, 4, v0', f'v_lshlrev_b32 {v(vL8)}, 3, v0',
  f's_movk_i32 {s(sC8K)}, 0x2000',
  f's_lshl2_add_u32 {s(sT)}, {s(sLOC)}, {s(sW)}', f's_lshl_b32 {s(sT)}, {s(sT)}, 14',
  f's_lshl_b32 {s(sT2)}, {s(sXCD)}, 7', f's_add_u32 {s(sT)}, {s(sT)}, {s(sT2)}',
  f'v_lshl_add_u32 {v(t0)}, {v(tL3)}, 10, {s(sT)}', f'v_lshl_add_u32 {v(vK1)}, {v(tL7)}, 4, {v(t0)}',
  f'v_subrev_u32 {v(vK0)}, {s(sC8K)}, {v(vK1)}',
  f's_lshl_b32 {s(sT2)}, {s(sXCD)}, 9', f'v_add_u32 {v(vSHA)}, {s(sT2)}, {v(vL8)}',
  f's_mul_i32 {s(sBLK)}, {s(sW)}, 5120', f's_add_u32 {s(sBLK)}, {s(sBLK)}, {L_KVS}',
  f's_and_b32 {s(sJ)}, {s(sLOC)}, 7',
  f's_lshr_b32 {s(sT)}, {s(sLOC)}, 3',
  f's_lshr_b32 {s(sTB)}, {s(sXCD)}, 1', f's_lshl2_add_u32 {s(sTB)}, {s(sTB)}, {s(sT)}',
  f's_lshr_b32 {s(sCB)}, {s(sJ)}, 1',
  f's_add_u32 {s(sSIG)}, {s(sT)}, {s(sCB)}', f's_and_b32 {s(sSIG)}, {s(sSIG)}, 3', f's_mov_b32 {s(sSIGX)}, {s(sSIG)}',
  f's_and_b32 {s(sT)}, {s(sXCD)}, 1',
  f's_lshl3_add_u32 {s(sFS)}, {s(sT)}, {s(sJ)}',
  f's_lshl2_add_u32 {s(sCB)}, {s(sT)}, {s(sCB)}',
  f's_and_b32 {s(sTH)}, {s(sJ)}, 1',
  f's_mul_i32 {s(sLW1)}, {s(sW)}, 7168', f's_mul_i32 {s(sW1W)}, {s(sW)}, {32 * 3584}',
  f's_lshl_b32 {s(sRB)}, {s(sW)}, 12',
  f's_lshr_b32 {s(sXH)}, {s(sW)}, 1', f's_lshl_b32 {s(sXH)}, {s(sXH)}, 7',
  f's_mul_i32 {s(sXB)}, {s(sW)}, 12288', f's_add_u32 {s(sXB)}, {s(sXB)}, {L_XS}',
  f'v_and_b32 {v(tL15)}, 15, v0', f'v_lshrrev_b32 {v(tG)}, 4, v0',
  f'v_bfe_u32 {v(tR4)}, v0, 2, 2', f'v_and_b32 {v(tC4)}, 3, v0')
E(f's_mul_i32 {s(sT)}, {s(sFS)}, 224', f's_add_u32 {s(sT)}, {s(sT)}, 4096',
  f's_lshl_b32 {s(sT2)}, {s(sTH)}, 5', f's_add_u32 {s(sT2)}, {s(sT)}, {s(sT2)}',
  f's_movk_i32 {s(sOW2)}, 3584',
  f'v_lshrrev_b32 {v(t0)}, 2, v0', f'v_mul_u32_u24 {v(t0)}, {s(sOW2)}, {v(t0)}',
  f'v_lshrrev_b32 {v(t1)}, 5, v0', f'v_lshlrev_b32 {v(t2)}, 1, {v(t1)}', f'v_xor_b32 {v(t2)}, {v(tC4)}, {v(t2)}',
  f'v_lshl_add_u32 {v(t0)}, {v(t2)}, 4, {v(t0)}',
  f'v_add_u32 {v(vWF)}, {s(sT2)}, {v(t0)}')
for i in range(1, 6):
    sec, hh = i >> 1, i & 1
    d = 64 * sec + 57344 * hh - 1024 * (i & 3)
    E(f'v_add_u32 {v(vWF + i)}, {d & 0xffffffff}, {v(vWF)}')
E(f's_cmp_eq_u32 {s(sTH)}, 0', f's_cselect_b32 {s(sT2)}, 192, 0', f's_add_u32 {s(sT2)}, {s(sT)}, {s(sT2)}',
  f's_sub_u32 {s(sT2)}, {s(sT2)}, 2048',
  f'v_bfe_u32 {v(t0)}, v0, 2, 3', f'v_lshl_add_u32 {v(t0)}, {v(t1)}, 4, {v(t0)}',
  f'v_bfe_u32 {v(t1)}, v0, 1, 1', f'v_lshl_add_u32 {v(t0)}, {v(t1)}, 3, {v(t0)}',
  f'v_mul_u32_u24 {v(t0)}, {s(sOW2)}, {v(t0)}',
  f'v_and_b32 {v(t1)}, 1, v0', f'v_lshl_add_u32 {v(t0)}, {v(t1)}, 4, {v(t0)}',
  f'v_add_u32 {v(vWF + 6)}, {s(sT2)}, {v(t0)}')
E(f's_lshl2_add_u32 {s(sT)}, {s(sTB)}, {s(sW)}', f's_lshl_b32 {s(sT)}, {s(sT)}, 15',
  f'v_xor_b32 {v(t0)}, {v(tL7)}, {v(tG)}', f'v_lshlrev_b32 {v(t0)}, 4, {v(t0)}',
  f'v_lshl_add_u32 {v(t3)}, {v(tL3)}, 10, {v(t0)}',
  f'v_add_u32 {v(vXD)}, {s(sT)}, {v(t3)}',
  f'v_xor_b32 {v(t0)}, 64, {v(vXD)}', f'v_add_u32 {v(vXD + 1)}, 7168, {v(t0)}',
  f'v_add_u32 {v(vXD + 2)}, 14336, {v(vXD)}', f'v_add_u32 {v(vXD + 3)}, 14336, {v(vXD + 1)}')
E(srd(rK, pK, 0x200000), srd(rV, pV, 0x200000))
E(f's_mov_b32 m0, {s(sBLK)}',
  f's_sub_u32 {s(rW1)}, {s(pW1)}, 4096',
  I(f'buffer_load_dwordx4 {v(vK0)}, {s(rK, 4)}, 0 offen lds', tok='kv0'),
  f's_add_u32 m0, {s(sBLK)}, 1024',
  f's_subb_u32 {s(rW1 + 1)}, {s(pW1 + 1)}, 0'.replace('s_subb_u32', 's_mov_b32').replace(', 0', ''),
  I(f'buffer_load_dwordx4 {v(vK1)}, {s(rK, 4)}, 0 offen lds', tok='kv1'),
  f's_add_u32 m0, {s(sBLK)}, 2048',
  f's_mov_b32 {s(rW1 + 2)}, {512 * 3584 + 4096}',
  I(f'buffer_load_dwordx4 {v(vK1)}, {s(rK, 4)}, {s(sC8K)} offen lds', tok='kv2'),
  f's_add_u32 m0, {s(sBLK)}, 3072',
  f's_mov_b32 {s(rW1 + 3)}, 0x20000',
  I(f'buffer_load_dwordx4 {v(vK1)}, {s(rV, 4)}, 0 offen lds', tok='kv3'),
  f's_add_u32 m0, {s(sBLK)}, 4096',
  f's_cmp_lt_u32 {s(pW1)}, 4096',
  I(f'buffer_load_dwordx4 {v(vK1)}, {s(rV, 4)}, {s(sC8K)} offen lds', tok='kv4'),
  f's_subb_u32 {s(rW1 + 1)}, {s(rW1 + 1)}, 0', f's_and_b32 {s(rW1 + 1)}, {s(rW1 + 1)}, 0xffff',
  I(f'global_load_dwordx2 {v(vSH, 2)}, {v(vSHA)}, {s(pSH, 2)}', tok='sh'))
E(srd(rX, pQ, 0x200000))


def w1_dma(st):
    base = L_W1 + st * 28672
    items = []
    pre = [f's_mul_i32 {s(sOW1)}, {s(sSIG)}, {4 * 32 * 3584}', f's_add_u32 m0, {s(sLW1)}, {base}',
           f's_add_u32 {s(sOW1)}, {s(sOW1)}, {s(sW1W)}']
    for i in range(7):
        if i == 4:
            pre = [f's_add_u32 m0, {s(sLW1)}, {base + 4096}', f's_add_u32 {s(sSIG)}, {s(sSIG)}, 1', f's_and_b32 {s(sSIG)}, {s(sSIG)}, 3']
        items.append(flat(pre + [I(f'buffer_load_dwordx4 {v(vWF + i)}, {s(rW1, 4)}, {s(sOW1)} offen offset:{1024 * (i & 3)} lds',
                                   tok=f'w1_{st}_{i}')]))
        pre = []
    return items


def x_dma(h):
    items = []
    if h & 1 == 0:
        pre = [f's_add_u32 m0, {s(sXB)}, {4096 * (h % 3)}', f's_lshl_b32 {s(sOX)}, {s(sSIGX)}, 8', f's_or_b32 {s(sOX)}, {s(sOX)}, {s(sXH)}']
    else:
        pre = [f's_add_u32 m0, {s(sXB)}, {4096 * (h % 3)}', f's_xor_b32 {s(sOX)}, {s(sOX)}, 128',
               f's_add_u32 {s(sSIGX)}, {s(sSIGX)}, 1', f's_and_b32 {s(sSIGX)}, {s(sSIGX)}, 3']
    for i in range(4):
        aft = [f'xr_{h - 3}_3'] if (h >= 3 and i == 0) else []
        items.append(flat(pre + [I(f'buffer_load_dwordx4 {v(vXD + i)}, {s(rX, 4)}, {s(sOX)} offen offset:{1024 * i} lds',
                                   tok=f'xd_{h}_{i}', after=aft)]))
        pre = []
    return items


def xf(st, p, tt):
    h = 2 * st + (p >> 1)
    return vXF + 16 * (h % 4) + ((p & 1) * 2 + tt) * 4


def x_read(h):
    out = []
    n = 0
    for pp in range(2):
        for tt in range(2):
            out.append(I(f'ds_read_b128 {v(xf(h >> 1, 2 * (h & 1) + pp, tt), 4)}, {v(vXR + pp)} offset:{4096 * (h % 3) + 2048 * tt}',
                         tok=f'xr_{h}_{n}', after=[f'xd_{h}_3']))
            n += 1
    return out


E(w1_dma(0))
E(x_dma(0))
sx = 224
E(f's_lshl4_add_u32 {s(sT)}, {s(sTB)}, {s(sFS)}', f's_lshl2_add_u32 {s(sT)}, {s(sT)}, {s(sW)}',
  f's_lshl_b32 {s(sOST)}, {s(sT)}, 5', f's_lshl_b32 {s(sT)}, {s(sT)}, 11',
  f'buffer_load_dwordx4 {v(sx, 4)}, {v(vL16)}, {s(rX, 4)}, {s(sT)} offen',
  f'buffer_load_dwordx4 {v(sx + 4, 4)}, {v(vL16)}, {s(rX, 4)}, {s(sT)} offen offset:1024',
  f's_add_u32 {s(sOST)}, {s(sOST)}, {WS_STAT}')
E(srd(rWS, pWS, WS_END),
  f's_memrealtime {s(sN, 2)}',
  f'v_cmp_eq_u32 vcc, 0, v0', f'v_mov_b32 {v(t0)}, 0x80000000',
  f's_mov_b32 {s(rOUT)}, {s(pDBG)}', f's_and_b32 {s(rOUT + 1)}, {s(pDBG + 1)}, 0xffff',
  f'v_cndmask_b32_e64 {v(vFL)}, {v(t0)}, 0, vcc',
  f's_or_b32 {s(sT)}, s2, {s(sW)}', f's_cmp_eq_u32 {s(sT)}, 0', f's_cselect_b32 {s(rOUT + 2)}, 8, 0',
  f's_mov_b32 {s(rOUT + 3)}, 0x20000',
  's_waitcnt lgkmcnt(0)', f's_or_b32 {s(sT)}, {s(sN)}, 1',
  f'v_mov_b32 {v(vN)}, {s(sT)}', f'v_mov_b32 {v(vN + 1)}, {s(sN + 1)}',
  f'buffer_store_dwordx2 {v(vN, 2)}, {v(vFL)}, {s(rOUT, 4)}, 0 offen sc1')
E(f's_getpc_b64 {s(sPC, 2)}', 'Lpc:',
  f'v_min_u32 {v(vDUM)}, Lcode_end-Lpc-4, {v(vDUM)}',
  f'global_load_dword {v(vDUM)}, {v(vDUM)}, {s(sPC, 2)}')

setup = []


def S(*x):
    setup.extend([[i] for i in flat(x)])


S(f'v_lshl_add_u32 {v(t0)}, {v(tG)}, 3, {v(tR4)}', f'v_lshlrev_b32 {v(t0)}, 6, {v(t0)}',
  f'v_lshl_add_u32 {v(t0)}, {v(tC4)}, 3, {v(t0)}',
  f'v_and_b32 {v(t1)}, 1, {v(tG)}', f'v_lshlrev_b32 {v(t1)}, 5, {v(t1)}',
  f'v_add_u32 {v(vAB)}, {v(t0)}, {v(t1)}', f'v_xor_b32 {v(vAB + 1)}, 32, {v(vAB)}',
  f'v_lshrrev_b32 {v(t2)}, 1, {v(tG)}', f'v_lshl_add_u32 {v(t2)}, {v(t2)}, 3, {v(tR4)}', f'v_lshlrev_b32 {v(t2)}, 6, {v(t2)}',
  f'v_lshl_add_u32 {v(t2)}, {v(tC4)}, 3, {v(t2)}', f'v_add_u32 {v(vAB + 2)}, {v(t2)}, {v(t1)}')
S(f's_and_b32 {s(sT)}, {s(sW)}, 1', f's_lshl_b32 {s(sT)}, {s(sT)}, 2',
  f'v_lshrrev_b32 {v(t0)}, 1, {v(tL15)}', f'v_xor_b32 {v(t0)}, {v(t0)}, {v(tG)}', f'v_xor_b32 {v(t0)}, {s(sT)}, {v(t0)}',
  f'v_lshlrev_b32 {v(t0)}, 4, {v(t0)}', f'v_lshl_add_u32 {v(t0)}, {v(tL15)}, 7, {v(t0)}',
  f'v_add_u32 {v(vXR)}, {s(sXB)}, {v(t0)}', f'v_xor_b32 {v(vXR + 1)}, 64, {v(vXR)}')
S(f'v_lshlrev_b32 {v(t0)}, 7, {v(tR4)}', f'v_lshl_add_u32 {v(t0)}, {v(tG)}, 5, {v(t0)}',
  f'v_lshl_add_u32 {v(t0)}, {v(tC4)}, 3, {v(t0)}', f'v_add_u32 {v(vKT)}, {s(sBLK)}, {v(t0)}')
S(f's_mov_b32 {s(sONE)}, 0x3f803f80', f'v_mov_b32 {v(t1)}, {s(sONE)}')
for u in range(7):
    S(f'v_cmp_eq_u32 vcc, {u}, {v(tL15)}', f's_xor_b32 {s(sT)}, {s(sW)}, {u & 3}', f's_mul_i32 {s(sBP + (u & 3))}, {s(sT)}, 7168',
      f'v_cndmask_b32 {v(t2)}, 0, {v(t1)}, vcc',
      [f'v_accvgpr_write_b32 {a(aSEL + 4 * u + i)}, {v(t2)}' for i in range(4)])
S(srd(rW2, pW2, 1792 * 1024), srd(rOUT, pOUT, 0x200000))
S(f's_lshl_b32 {s(sT)}, {s(sXCD)}, 5', f's_add_u32 {s(sT)}, {s(sT)}, {s(sLOC)}',
  f's_lshl_b32 {s(sT2)}, {s(sT)}, 2',
  f's_load_dword {s(sD)}, {s(pD, 2)}, {s(sT2)}',
  f's_add_u32 {s(sT2)}, {s(sT2)}, {s(sW)}', f's_lshl_b32 {s(sFKV)}, {s(sT2)}, 7', f's_add_u32 {s(sFY)}, {s(sFKV)}, {WS_FY}',
  f's_lshl_b32 {s(sOY)}, {s(sT2)}, 11', f's_add_u32 {s(sOY)}, {s(sOY)}, {WS_Y}',
  f's_lshr_b32 {s(sT2)}, {s(sT2)}, 1', f's_lshl_b32 {s(sOKV)}, {s(sT2)}, 12',
  f's_add_u32 {s(rHS)}, {s(pHS)}, {s(sOKV)}', f's_addc_u32 {s(rHS + 1)}, {s(pHS + 1)}, 0',
  f's_and_b32 {s(rHS + 1)}, {s(rHS + 1)}, 0xffff', f's_movk_i32 {s(rHS + 2)}, 0x1000', f's_mov_b32 {s(rHS + 3)}, 0x20000',
  f's_add_u32 {s(sOKV)}, {s(sOKV)}, {WS_KVT}')
S(f's_mul_i32 {s(sT)}, {s(sW)}, {448 * 1024}', f's_lshl_b32 {s(sT2)}, {s(sCB)}, 7', f's_add_u32 {s(sT)}, {s(sT)}, {s(sT2)}',
  f'v_lshlrev_b32 {v(t0)}, 1, {v(tG)}', f'v_xor_b32 {v(t0)}, {v(tL7)}, {v(t0)}', f'v_lshlrev_b32 {v(t0)}, 4, {v(t0)}',
  f'v_lshl_add_u32 {v(t0)}, {v(tL3)}, 10, {v(t0)}', f'v_add_u32 {v(vW2)}, {s(sT)}, {v(t0)}',
  [f'v_add_u32 {v(vW2 + i)}, {7168 * i}, {v(vW2)}' for i in range(1, 4)])
S(f'v_lshl_add_u32 {v(t0)}, {v(tG)}, 2, {v(tR4)}', f'v_bfe_u32 {v(t1)}, {v(t0)}, 1, 2',
  f'v_lshlrev_b32 {v(t0)}, 7, {v(t0)}', f'v_lshl_add_u32 {v(t0)}, {v(tC4)}, 3, {v(t0)}',
  f'v_lshl_add_u32 {v(t0)}, {v(t1)}, 5, {v(t0)}', f'v_add_u32 {v(vB)}, {s(sRB)}, {v(t0)}',
  [f'v_xor_b32 {v(vB + t)}, {32 * t}, {v(vB)}' for t in range(1, 4)])
S(f's_lshr_b32 {s(sT)}, {s(sW)}, 1', f's_mul_i32 {s(sT2)}, {s(sT)}, 8320', f's_and_b32 {s(sCNT)}, {s(sW)}, 1',
  f's_lshl_b32 {s(sCNT)}, {s(sCNT)}, 8',
  f's_add_u32 {s(sT2)}, {s(sT2)}, {s(sCNT)}', f's_add_u32 {s(sT2)}, {s(sT2)}, {L_HC + 4}',
  f'v_and_b32 {v(t0)}, 1, v0', f'v_mul_u32_u24 {v(t0)}, 4160, {v(t0)}',
  f'v_lshrrev_b32 {v(t1)}, 1, {v(tL15)}', f'v_lshl_add_u32 {v(t0)}, {v(t1)}, 2, {v(t0)}',
  f'v_lshl_add_u32 {v(t0)}, {v(tG)}, 4, {v(t0)}', f'v_add_u32 {v(vG)}, {s(sT2)}, {v(t0)}',
  [f'v_add_u32 {v(vG + k)}, {1024 * k}, {v(vG)}' for k in range(1, 4)],
  f's_mul_i32 {s(sT2)}, {s(sT)}, 4608', f's_add_u32 {s(sT2)}, {s(sT2)}, {s(sCNT)}', f's_add_u32 {s(sT2)}, {s(sT2)}, {L_XR + 480}',
  f'v_lshlrev_b32 {v(t0)}, 4, {v(tG)}', f'v_lshlrev_b32 {v(t1)}, 5, {v(tL15)}', f'v_sub_u32 {v(t0)}, {v(t0)}, {v(t1)}',
  f'v_add_u32 {v(vF)}, {s(sT2)}, {v(t0)}')
K1 = -2.0 * 1.4426950408889634 * 0.7978845608028654
S(f's_mov_b32 {s(sGK)}, {f32(K1)}', f's_mov_b32 {s(sGK + 1)}, {f32(K1 * 0.044715)}')
S(f's_lshl2_add_u32 {s(sT)}, {s(sTB)}, {s(sW)}',
  f's_lshl4_add_u32 {s(sT2)}, {s(sT)}, {s(sFS)}', f's_lshl_b32 {s(sFH)}, {s(sT2)}, 7', f's_add_u32 {s(sFH)}, {s(sFH)}, {WS_FH}',
  f's_lshl_b32 {s(sT2)}, {s(sT)}, 5', f's_add_u32 {s(sT2)}, {s(sT2)}, {s(sFS)}', f's_mul_i32 {s(sOH)}, {s(sT2)}, 3584',
  f's_add_u32 {s(sOH)}, {s(sOH)}, {WS_H}',
  f's_lshl1_add_u32 {s(sCNT)}, {s(sTB)}, {s(sTH)}', f's_lshl2_add_u32 {s(sTILE)}, {s(sCNT)}, {s(sW)}')
for o in range(4):
    S(f's_add_u32 {s(sT)}, {s(sW)}, {1 + o}', f's_and_b32 {s(sT)}, {s(sT)}, 3',
      f's_lshl2_add_u32 {s(sT)}, {s(sCNT)}, {s(sT)}', f's_lshl2_add_u32 {s(sT)}, {s(sT)}, {s(sW)}',
      f's_mul_i32 {s(sHL + o)}, {s(sT)}, {4 * 3584}', f's_add_u32 {s(sHL + o)}, {s(sHL + o)}, {WS_H}')
vKBR, vKBS, vB1A, vG16, vEPA, vSTA, vHO = vT, vT + 1, vT + 3, vT + 4, vT + 6, vT + 8, vT + 9
S(f's_lshl_b32 {s(sT)}, {s(sW)}, 11', f's_add_u32 {s(sT)}, {s(sT)}, {L_KB}', f'v_add_u32 {v(vKBR)}, {s(sT)}, {v(vL16)}',
  f's_lshl2_add_u32 {s(sT)}, {s(sXCD)}, {s(sW)}', f's_lshl_b32 {s(sT)}, {s(sT)}, 16',
  f's_sub_u32 {s(sT2)}, 31, {s(sLOC)}', f's_lshl_b32 {s(sT2)}, {s(sT2)}, 7', f's_add_u32 {s(sT)}, {s(sT)}, {s(sT2)}',
  f's_add_u32 {s(sT)}, {s(sT)}, {WS_KVT}',
  f'v_xor_b32 {v(t0)}, {v(tL7)}, {v(tL3)}', f'v_lshlrev_b32 {v(t0)}, 4, {v(t0)}', f'v_lshl_add_u32 {v(t0)}, {v(tL3)}, 12, {v(t0)}',
  f'v_add_u32 {v(vKBS)}, {s(sT)}, {v(t0)}', f'v_add_u32 {v(vKBS + 1)}, 0x8000, {v(vKBS)}')
S(f's_mul_i32 {s(sT)}, {s(sFS)}, 224', f's_lshl_b32 {s(sT2)}, {s(sTH)}, 5', f's_add_u32 {s(sT2)}, {s(sT2)}, {s(sT)}',
  f'v_lshl_add_u32 {v(t0)}, {v(tL15)}, 5, {s(sT2)}',
  f's_cmp_eq_u32 {s(sTH)}, 0', f's_cselect_b32 {s(sT2)}, 192, 0', f's_add_u32 {s(sT2)}, {s(sT2)}, {s(sT)}',
  f'v_cmp_gt_u32 vcc, 6, {v(tL15)}', f'v_mov_b32 {v(t1)}, {s(sT2)}', f'v_lshlrev_b32 {v(vG16)}, 4, {v(tG)}',
  f'v_cndmask_b32 {v(t0)}, {v(t1)}, {v(t0)}, vcc',
  f'v_lshl_add_u32 {v(vB1A)}, {v(tG)}, 3, {v(t0)}',
  f's_lshl_b32 {s(sT)}, {s(sXCD)}, 14', f's_lshr_b32 {s(sT2)}, {s(sLOC)}, 3', f's_lshl_b32 {s(sT2)}, {s(sT2)}, 7',
  f's_add_u32 {s(sT)}, {s(sT)}, {s(sT2)}',
  f'v_lshrrev_b32 {v(t0)}, 1, v0', f'v_lshl_add_u32 {v(vPA)}, {v(t0)}, 9, {s(sT)}',
  f's_lshl_b32 {s(sT)}, {s(sTILE)}, 14', f's_lshl_b32 {s(sT2)}, {s(sCB)}, 7', f's_add_u32 {s(sT)}, {s(sT)}, {s(sT2)}',
  f'v_add_u32 {v(vEPA)}, {s(sT)}, {v(t3)}', f'v_xor_b32 {v(t0)}, 64, {v(vEPA)}', f'v_add_u32 {v(vEPA + 1)}, 7168, {v(t0)}',
  f'v_lshlrev_b32 {v(vSTA)}, 4, {v(tL15)}',
  f's_and_b32 {s(sT)}, {s(sW)}, 1', f's_lshl_b32 {s(sT)}, {s(sT)}, 11', f'v_add_u32 {v(vHO)}, {s(sT)}, {v(vL16)}')
glued = []
for it in setup:
    if glued and ('scc' in it[0].rd):
        glued[-1] = glued[-1] + it
    else:
        glued.append(it)
E(interleave(glued, x_dma(1) + w1_dma(1) + x_dma(2)))
E(stamp('setup'))

kq = 56
vq = 66
kf = 76
sf = 96
kvv = 100
vu = 116
kvp = 120
for q in range(5):
    E(I(f'ds_read_b64_tr_b16 {v(kq + 2 * q, 2)}, {v(vKT)} offset:{(4 + 4 * q) * 128}', after=['kv4']))
for q in range(4):
    E(f'ds_read_b64_tr_b16 {v(vq + 2 * q, 2)}, {v(vKT)} offset:{3072 + 512 * q}')
E(f's_and_b32 {s(sD + 1)}, {s(sD)}, 0xffff0000', f's_lshl_b32 {s(sD)}, {s(sD)}, 16')
E(f'v_lshlrev_b32 {v(sf)}, 16, {v(vSH)}', f'v_and_b32 {v(sf + 1)}, 0xffff0000, {v(vSH)}',
  f'v_lshlrev_b32 {v(sf + 2)}, 16, {v(vSH + 1)}', f'v_and_b32 {v(sf + 3)}, 0xffff0000, {v(vSH + 1)}')
for i in range(10):
    if i > 0:
        E(f'v_lshlrev_b32 {v(kf + 2 * i)}, 16, {v(kq + i)}')
    E(f'v_and_b32 {v(kf + 2 * i + 1)}, 0xffff0000, {v(kq + i)}')
for t in range(16):
    E(f'v_mul_f32 {v(kvv + t)}, {v(kf + t + 1)}, {v(sf + 3)}')
for j in (2, 1, 0):
    for t in range(16):
        E(f'v_fmac_f32 {v(kvv + t)}, {v(kf + t + 4 - j)}, {v(sf + j)}')
for i in range(8):
    E(f'v_lshlrev_b32 {v(vu)}, 16, {v(vq + i)}', f'v_and_b32 {v(vu + 1)}, 0xffff0000, {v(vq + i)}',
      f'v_pk_mul_f32 {v(kvv + 2 * i, 2)}, {v(kvv + 2 * i, 2)}, {v(vu, 2)}')
for d in range(8):
    E(f'v_cvt_pk_bf16_f32 {v(kvp + d)}, {v(kvv + 15 - 2 * d)}, {v(kvv + 14 - 2 * d)}')
E(f's_sub_u32 {s(sT)}, 3, {s(sW)}', f's_lshl_b32 {s(sT)}, {s(sT)}, 1',
  f'v_xor_b32 {v(t0)}, {s(sT)}, {v(tL7)}', f'v_lshlrev_b32 {v(t0)}, 4, {v(t0)}', f'v_lshl_add_u32 {v(t0)}, v0, 7, {v(t0)}',
  f'v_add_u32 {v(t0)}, {L_KB}, {v(t0)}', f'v_xor_b32 {v(t1)}, 16, {v(t0)}',
  f'ds_write_b128 {v(t0)}, {v(kvp, 4)}', I(f'ds_write_b128 {v(t1)}, {v(kvp + 4, 4)}', tok='kbw'))
E(stamp('kv'))
E(f'v_mov_b32 {v(vT + 10)}, 0')
NONCE_LD = f'global_load_dwordx2 {v(vN, 2)}, {v(vT + 10)}, {s(pDBG, 2)} sc1'
E(NONCE_LD)
rec = 232
q = 236
for i in range(4):
    c = '0' if i == 0 else None
    for r in range(2):
        E(f'v_dot2_f32_bf16 {v(q + r)}, {v(sx + 4 * r + i)}, {s(sONE)}, {c or v(q + r)}',
          f'v_dot2_f32_bf16 {v(q + 2 + r)}, {v(sx + 4 * r + i)}, {v(sx + 4 * r + i)}, {c or v(q + 2 + r)}')
E(f'v_permlane32_swap_b32 {v(q)}, {v(q + 1)}', f'v_permlane32_swap_b32 {v(q + 2)}, {v(q + 3)}',
  f'v_add_f32 {v(q)}, {v(q)}, {v(q + 1)}', f'v_add_f32 {v(q + 2)}, {v(q + 2)}, {v(q + 3)}',
  f'v_and_b32 {v(t0)}, 31, v0', f'v_cmp_eq_u32 vcc, 0, {v(t0)}',
  f'v_permlane16_swap_b32 {v(q)}, {v(q + 2)}', f'v_add_f32 {v(q)}, {v(q)}, {v(q + 2)}',
  f'v_lshrrev_b32 {v(t0)}, 1, v0', f'v_mov_b32 {v(t1)}, 0x80000000',
  f'v_add_f32_dpp {v(q)}, {v(q)}, {v(q)} row_ror:8 row_mask:0xf bank_mask:0xf',
  f'v_cndmask_b32 {v(vT + 11)}, {v(t1)}, {v(t0)}, vcc',
  f'v_add_f32_dpp {v(q)}, {v(q)}, {v(q)} row_ror:4 row_mask:0xf bank_mask:0xf',
  f'v_add_f32_dpp {v(q)}, {v(q)}, {v(q)} row_ror:2 row_mask:0xf bank_mask:0xf',
  f'v_add_f32_dpp {v(q)}, {v(q)}, {v(q)} row_ror:1 row_mask:0xf bank_mask:0xf',
  f'v_mov_b32 {v(q + 1)}, {v(q)}', f'v_permlane16_swap_b32 {v(q)}, {v(q + 1)}',
  f'v_mul_f32 {v(rec)}, {f32(1 / 512)}, {v(q)}', f'v_mul_f32 {v(q + 1)}, {f32(1 / 512)}, {v(q + 1)}',
  f'v_fma_f32 {v(q + 1)}, -{v(rec)}, {v(rec)}, {v(q + 1)}', f'v_max_f32 {v(q + 1)}, 0, {v(q + 1)}',
  f'v_add_f32 {v(q + 1)}, {f32(1e-5)}, {v(q + 1)}', f'v_rsq_f32 {v(rec + 1)}, {v(q + 1)}')
E(stamp('stats'))


def w2_dma(k):
    b = k % 4
    it = [f's_add_u32 m0, {s(sRB)}, {16384 * b}', f's_mov_b32 {s(sOW2)}, {32768 * k}']
    res = []
    for i in range(4):
        aft = [f'w2t_{k - 4}_7'] if (k >= 4 and i == 0) else []
        it.append(I(f'buffer_load_dwordx4 {v(vW2 + i)}, {s(rW2, 4)}, {s(sOW2)} offen offset:{1024 * i} lds', tok=f'w2d_{k}_{i}', after=aft))
        res.append(flat(it))
        it = []
    return res


def w2_tr(k):
    b = k % 4
    res = []
    for h in range(2):
        for t in range(4):
            n = h * 4 + t
            res.append([I(f'ds_read_b64_tr_b16 {a(16 * k + 4 * t + 2 * h, 2)}, {v(vB + t)} offset:{16384 * b + 2048 * h}',
                          tok=f'w2t_{k}_{n}', after=[f'w2d_{k}_{2 * h + 1}'])])
    return res


w2_stream = []
w2_stream += w2_dma(3)
for k in range(14):
    w2_stream += w2_tr(k)
    if k + 4 < 14:
        w2_stream += w2_dma(k + 4)
w2_pos = [0]


def w2_take(nk):
    n = int(round(nk * 12))
    r = w2_stream[w2_pos[0]:w2_pos[0] + n]
    w2_pos[0] += len(r)
    return r


LOOK = 3


def acc1(u, tt):
    return vACC + (u * 2 + tt) * 4


def w1_reads(n):
    st, p, u = n // 28, (n // 7) % 4, n % 7
    r = vRING + 4 * (n % 8)
    out = []
    aft = []
    if u == 0:
        out += [f's_add_u32 {s(sBLK)}, {s(sBP + p)}, {L_W1 + st * 28672}']
        out += [f'v_add_u32 {v(vA + i)}, {s(sBLK)}, {v(vAB + i)}' for i in range(3)]
        if p == 0:
            aft = [f'w1_{st}_6']
        if p == 1:
            out += [I('s_barrier', after={0: ['kbw'], 1: ['kbr1'], 3: ['xr_7_3']}.get(st, []))]
    for h in range(2):
        if u < 6:
            out.append(I(f'ds_read_b64_tr_b16 {v(r + 2 * h, 2)}, {v(vA + (u & 1))} offset:{2048 * (u >> 1) + 256 * h}', after=aft))
        else:
            out.append(I(f'ds_read_b64_tr_b16 {v(r + 2 * h, 2)}, {v(vA + 2)} offset:{6144 + 256 * h}', after=aft))
    return flat(out)


def g1_step(n):
    st, p, u = n // 28, (n // 7) % 4, n % 7
    first = (st == 0 and p == 0)
    r = vRING + 4 * (n % 8)
    out = []
    for tt in range(2):
        c = '0' if first else v(acc1(u, tt), 4)
        out.append(f'v_mfma_f32_16x16x32_bf16 {v(acc1(u, tt), 4)}, {v(r, 4)}, {v(xf(st, p, tt), 4)}, {c}')
    if p == 0:
        c = '0' if (st == 0 and u == 0) else a(aCS, 4)
        out.append(f'v_mfma_f32_16x16x32_bf16 {a(aCS, 4)}, {v(r, 4)}, {a(aSEL + 4 * u, 4)}, {c}')
    return flat(out)


kb = 208
hreg = 208
he = 220
xr = 240
str_ = 248
b1r = 228
preA = {0: x_dma(3), 1: x_dma(5), 2: x_dma(7), 3: []}
side = {}
side[0] = [[I(f'ds_read_b128 {v(kb, 4)}, {v(vKBR)}')], [I(f'ds_read_b128 {v(kb + 4, 4)}, {v(vKBR)} offset:1024', tok='kbr1')],
           [I(f'buffer_store_dwordx4 {v(kb, 4)}, {v(vKBS)}, {s(rWS, 4)}, 0 offen sc1', tok='kvst0')],
           [I(f'buffer_store_dwordx4 {v(kb + 4, 4)}, {v(vKBS + 1)}, {s(rWS, 4)}, 0 offen sc1', tok='kvst1')]]
side[0] += w1_dma(2)
side[0] += [poll_check('nonce', f'v_cmp_eq_u64 vcc, 0, {v(vN, 2)}', NONCE_LD) +
            flat([f'v_readfirstlane_b32 {s(sN)}, {v(vN)}', f'v_readfirstlane_b32 {s(sN + 1)}, {v(vN + 1)}',
                  f'v_mov_b32 {v(rec + 2)}, {v(vN)}', f'v_mov_b32 {v(rec + 3)}, {v(vN + 1)}',
                  f'buffer_store_dwordx4 {v(rec, 4)}, {v(vT + 11)}, {s(rWS, 4)}, {s(sOST)} offen sc1'])]
side[0] += x_dma(4)
side[1] = w1_dma(3) + [[I(f'buffer_store_dwordx2 {v(vN, 2)}, {v(vFL)}, {s(rWS, 4)}, {s(sFKV)} offen sc1', after=['kvst1'])]] + x_dma(6)
side[1] += [flat([f'v_subrev_u32 {v(vT)}, 4, {v(vHO)}', f'v_add_u32 {v(vT + 1)}, 1020, {v(vHO)}']),
            [I(f'buffer_load_dwordx4 {v(hreg, 4)}, {v(vHO)}, {s(rHS, 4)}, 0 offen')],
            [I(f'buffer_load_dwordx4 {v(hreg + 4, 4)}, {v(vHO)}, {s(rHS, 4)}, 0 offen offset:1024')],
            [I(f'buffer_load_dword {v(hreg + 8)}, {v(vT)}, {s(rHS, 4)}, 0 offen')],
            [I(f'buffer_load_dword {v(hreg + 9)}, {v(vT + 1)}, {s(rHS, 4)}, 0 offen')],
            [I(f'global_load_dwordx2 {v(b1r, 2)}, {v(vB1A)}, {s(pB1, 2)}')]]
side[2] = w2_dma(0) + w2_dma(1) + w2_dma(2) + [[I(POLL_LD)]]
hprep = []
for b in range(2):
    src = hreg + 4 * b
    hprep += [[I(f'v_alignbit_b32 {v(he + 4 * b)}, {v(src)}, {v(hreg + 8 + b)}, 16')]]
    hprep += [[I(f'v_alignbit_b32 {v(he + 4 * b + i)}, {v(src + i)}, {v(src + i - 1)}, 16')] for i in range(1, 4)]
hprep.append(flat([f's_lshr_b32 {s(sT)}, {s(sW)}, 1', f's_mul_i32 {s(sT)}, {s(sT)}, 8320', f's_add_u32 {s(sT)}, {s(sT)}, {L_HC + 32}',
                   f'v_add_u32 {v(vT)}, {s(sT)}, {v(vHO)}']))
hprep += [[I(f'ds_write_b128 {v(vT)}, {v(he, 4)}')], [I(f'ds_write_b128 {v(vT)}, {v(he + 4, 4)} offset:1024')],
          [I(f'ds_write_b128 {v(vT)}, {v(hreg, 4)} offset:4160')], [I(f'ds_write_b128 {v(vT)}, {v(hreg + 4, 4)} offset:{4160 + 1024}')]]
hprep += [flat([f'v_mov_b32 {v(vT + 10)}, 0', f'v_mov_b32 {v(vT + 11)}, 0',
                f's_lshr_b32 {s(sT)}, {s(sW)}, 1', f's_mul_i32 {s(sT)}, {s(sT)}, 4608', f's_add_u32 {s(sT)}, {s(sT)}, {L_XR}',
                f'v_add_u32 {v(vT + 1)}, {s(sT)}, {v(vL8)}', f'ds_write_b64 {v(vT + 1)}, {v(vT + 10, 2)} offset:4096',
                f'v_add_u32 {v(vT + 2)}, {s(sT)}, {v(vHO)}']),
          flat([f's_mul_i32 {s(sT)}, {s(sW)}, 4160', f's_add_u32 {s(sT)}, {s(sT)}, {L_HC}',
                f'v_and_b32 {v(vT + 1)}, 24, {v(vL8)}', f'v_add_u32 {v(vT + 1)}, {s(sT)}, {v(vT + 1)}', f'ds_write_b64 {v(vT + 1)}, {v(vT + 10, 2)}'])]
STAT_LD = [f'buffer_load_dwordx4 {v(str_ + 4 * tt, 4)}, {v(vSTA)}, {s(rWS, 4)}, {s(sOST)} offen offset:{256 * tt} sc1' for tt in range(2)]
b1f = 232
side[3] = ([poll_check('kv', POLL_CMP, POLL_LD)] +
           [[I(f'buffer_load_dwordx4 {v(xr, 4)}, {v(vHO)}, {s(rWS, 4)}, {s(sOKV)} offen sc1')],
            [I(f'buffer_load_dwordx4 {v(xr + 4, 4)}, {v(vHO)}, {s(rWS, 4)}, {s(sOKV)} offen offset:1024 sc1')],
            flat([f's_lshl2_add_u32 {s(sOST)}, {s(sTB)}, {s(sW)}', f's_lshl_b32 {s(sOST)}, {s(sOST)}, 9', f's_add_u32 {s(sOST)}, {s(sOST)}, {WS_STAT}',
                  STAT_LD[0]]), [I(STAT_LD[1])]] +
           w2_take(4 / 12) + hprep +
           [flat([f's_lshl_b32 {s(sT)}, {s(sW)}, 10', f's_add_u32 {s(sT)}, {s(sT)}, {L_CS}',
                  f'v_add_u32 {v(vT + 1)}, {s(sT)}, {v(vL16)}', f'ds_write_b128 {v(vT + 1)}, {a(aCS, 4)}']),
            flat([f'v_lshlrev_b32 {v(b1f)}, 16, {v(b1r)}', f'v_and_b32 {v(b1f + 1)}, 0xffff0000, {v(b1r)}']),
            flat([f'v_lshlrev_b32 {v(b1f + 2)}, 16, {v(b1r + 1)}', f'v_and_b32 {v(b1f + 3)}, 0xffff0000, {v(b1r + 1)}']),
            flat([f's_lshl_b32 {s(sT)}, {s(sW)}, 11', f's_add_u32 {s(sT)}, {s(sT)}, {L_CS + 4096}',
                  f'v_add_u32 {v(vG16)}, {s(sT)}, {v(vG16)}', f'v_lshl_add_u32 {v(vB1A)}, {v(vSTA)}, 2, {v(vG16)}']),
            flat([f'ds_write_b128 {v(vB1A)}, {v(b1f, 4)} offset:1024', f'v_add_u32 {v(vT + 1)}, {L_CS}, {v(vL16)}'])] +
           w2_take(1) +
           [[I(f'ds_write_b128 {v(vT + 2)}, {v(xr, 4)}')], [I(f'ds_write_b128 {v(vT + 2)}, {v(xr + 4, 4)} offset:1024')]])

E(x_read(0))
for n in range(LOOK):
    E(w1_reads(n))
for st in range(4):
    steps = []
    for n in range(28 * st, 28 * st + 28):
        k = n - 28 * st
        it = []
        if k == 24 and st < 3:
            it += x_read(2 * st + 2)
        if (k == 9 and st < 3) or (k == 1 and st == 3):
            it += x_read(2 * st + 1)
        if n + LOOK < 112:
            it += w1_reads(n + LOOK)
        it += g1_step(n)
        steps.append(it)
    head = interleave(steps[:5], preA[st], end=4)
    rest = interleave(steps[5:], side[st], start=(3 if st == 3 else 0), end=(22 if st == 3 else 19))
    E(head, rest)
    E(stamp(f'g1s{st}'))

vR, vRM = 240, 244
STAT_CMP = [f'v_cmp_ne_u64 vcc, {s(sN, 2)}, {v(str_ + 2, 2)}', f'v_cmp_ne_u64 {s(sM2, 2)}, {s(sN, 2)}, {v(str_ + 6, 2)}',
            f's_or_b64 vcc, vcc, {s(sM2, 2)}']
E(poll_check('stat', STAT_CMP, STAT_LD))
E('s_waitcnt lgkmcnt(0)', 's_barrier')
cx = 56
for w in range(4):
    E(f'ds_read_b128 {v(cx + 4 * w, 4)}, {v(vT + 1)} offset:{1024 * w}')
vCSr, vB1r = 144, 172
for u in range(7):
    E(f'ds_read_b128 {v(vB1r + 4 * u, 4)}, {v(vG16)} offset:{1024 + 64 * u}')
for tt in range(2):
    R, RM, m, r1 = vR + 2 * tt, vRM + 2 * tt, str_ + 4 * tt, str_ + 4 * tt + 1
    E(f'v_mul_f32 {v(R)}, {v(r1)}, {v(r1)}', f'v_mul_f32 {v(R)}, {f32(1e-5)}, {v(R)}', f'v_sub_f32 {v(R)}, {f32(1.0 + 1e-5)}, {v(R)}',
      f'v_rsq_f32 {v(R)}, {v(R)}', f'v_mul_f32 {v(R)}, {v(R)}, {v(r1)}', f'v_mul_f32_e64 {v(RM)}, -{v(R)}, {v(m)}')
E([f'v_pk_add_f32 {v(cx + i, 2)}, {v(cx + i, 2)}, {v(cx + 4 + i, 2)}' for i in (0, 2)],
  [f'v_pk_add_f32 {v(cx + 8 + i, 2)}, {v(cx + 8 + i, 2)}, {v(cx + 12 + i, 2)}' for i in (0, 2)],
  [f'v_pk_add_f32 {v(cx + i, 2)}, {v(cx + i, 2)}, {v(cx + 8 + i, 2)}' for i in (0, 2)],
  f'ds_write_b128 {v(vB1A)}, {v(cx, 4)}')
for u in range(7):
    E(f'ds_read_b128 {v(vCSr + 4 * u, 4)}, {v(vG16)} offset:{64 * u}')
E(stamp('b4'))

gt = 72
gel = []
po = [200, 204, 208, 212]
pi = 0


def gelu_pair(accr, csr, b1r_, R, RM, dst, tset):
    t = gt + 8 * tset
    return [
        f'v_pk_fma_f32 {v(t, 2)}, {v(csr, 2)}, {v(RM, 2)}, {v(b1r_, 2)} op_sel_hi:[1,0,1]',
        f'v_pk_fma_f32 {v(t, 2)}, {v(accr, 2)}, {v(R, 2)}, {v(t, 2)} op_sel_hi:[1,0,1]',
        f'v_pk_mul_f32 {v(t + 2, 2)}, {v(t, 2)}, {v(t, 2)}',
        f'v_pk_fma_f32 {v(t + 2, 2)}, {v(t + 2, 2)}, {s(sGK, 2)}, {s(sGK, 2)} op_sel:[0,1,0] op_sel_hi:[1,1,0]',
        f'v_pk_mul_f32 {v(t + 2, 2)}, {v(t + 2, 2)}, {v(t, 2)}',
        f'v_exp_f32 {v(t + 4)}, {v(t + 2)}', f'v_exp_f32 {v(t + 5)}, {v(t + 3)}',
        f'v_pk_add_f32 {v(t + 4, 2)}, {v(t + 4, 2)}, 1.0 op_sel_hi:[1,0]',
        f'v_rcp_f32 {v(t + 6)}, {v(t + 4)}', f'v_rcp_f32 {v(t + 7)}, {v(t + 5)}',
        f'v_pk_mul_f32 {v(t + 6, 2)}, {v(t + 6, 2)}, {v(t, 2)}',
        f'v_cvt_pk_bf16_f32 {v(dst)}, {v(t + 6)}, {v(t + 7)}']


def zip2(x, y):
    out = []
    for p_, q_ in zip(x, y):
        out += [p_, q_]
    return out


for tt in range(2):
    for p in range(4):
        dst = po[pi % 4]
        pi += 1
        us = [2 * p, 2 * p + 1] if p < 3 else [6]
        for k, u in enumerate(us):
            A = gelu_pair(acc1(u, tt), vCSr + 4 * u, vB1r + 4 * u, vR + 2 * tt, vRM + 2 * tt, dst + 2 * k, 0)
            B = gelu_pair(acc1(u, tt) + 2, vCSr + 4 * u + 2, vB1r + 4 * u + 2, vR + 2 * tt, vRM + 2 * tt, dst + 2 * k + 1, 1)
            gel += [[I(x)] for x in zip2(A, B)]
        if tt == 1 and p == 0:
            gel.append(flat([f's_add_u32 {s(sOH)}, {s(sOH)}, {16 * 3584}']))
        if p < 3:
            gel.append([I(f'buffer_store_dwordx4 {v(dst, 4)}, {v(vL16)}, {s(rWS, 4)}, {s(sOH)} offen offset:{1024 * p} sc1', tok=f'hst{tt}{p}')])
        else:
            gel.append([I(f'buffer_store_dwordx2 {v(dst, 2)}, {v(vL8)}, {s(rWS, 4)}, {s(sOH)} offen offset:3072 sc1', tok=f'hst{tt}{p}')])
E(interleave(gel, w2_take(4)))
E(stamp('gelu'))

cacc = 56
GF = [88, 152]
vH = [200, 88, 144, 200]


def conv_reads(cl):
    base = GF[cl & 1]
    out = []
    for i in range(8):
        g = base + 4 * i
        o = 16 * cl + 128 * (i & 1)
        out.append([I(f'ds_read2_b32 {v(g, 2)}, {v(vG + (i >> 1))} offset0:{o} offset1:{o + 1}')])
        out.append([I(f'ds_read2_b32 {v(g + 2, 2)}, {v(vG + (i >> 1))} offset0:{o + 2} offset1:{o + 3}')])
        out.append([I(f'ds_read_b128 {v(base + 32 + 4 * i, 4)}, {v(vF)} offset:{3584 - 512 * i + 64 * cl}')])
    return out


def conv_mfma(cl):
    base = GF[cl & 1]
    out = []
    seen = set()
    pairs = sorted([(x, y) for x in range(8) for y in range(8) if x + y <= 7], key=lambda t: (max(t), t[0] + t[1]))
    for (x, y) in pairs:
        d = v(cacc + 4 * (x + y), 4)
        c = d
        if cl == 0 and (x + y) not in seen:
            c = '0'
            seen.add(x + y)
        out.append([I(f'v_mfma_f32_16x16x32_bf16 {d}, {v(base + 4 * x, 4)}, {v(base + 32 + 4 * y, 4)}, {c}')])
    return out


def h_loads(o):
    out = []
    last_hi = [0]

    def hload(dst, w, vo, off):
        hi, lo = off // 3584 * 3584, off % 3584
        pre = []
        if hi != last_hi[0]:
            pre = [f's_add_u32 {s(sHL + o)}, {s(sHL + o)}, {hi - last_hi[0]}']
            last_hi[0] = hi
        return flat(pre + [f'buffer_load_dword{w} {dst}, {v(vo)}, {s(rWS, 4)}, {s(sHL + o)} offen offset:{lo} sc1'])
    for kap in range(14):
        aa, kk = kap // 7, kap % 7
        r = vH[o] + 4 * kap
        if kk == 3:
            for hf in range(2):
                out.append(hload(v(r + 2 * hf, 2), 'x2', vL8, (2 * aa + hf) * 3584 + 3072))
        else:
            fsl = 2 * aa + (1 if kk > 3 else 0)
            p = kk if kk < 3 else kk - 4
            out.append(hload(v(r, 4), 'x4', vL16, fsl * 3584 + p * 1024))
    return out


E(conv_reads(0))
hflag = [I(f'buffer_store_dwordx2 {v(vN, 2)}, {v(vFL)}, {s(rWS, 4)}, {s(sFH)} offen sc1', after=['hst13'])]
hpoll_addr = flat([f's_lshl1_add_u32 {s(sT)}, {s(sTB)}, {s(sTH)}', f's_lshl3_add_u32 {s(sT)}, {s(sT)}, {s(sW)}', f's_lshl_b32 {s(sT)}, {s(sT)}, 9',
                   f's_add_u32 {s(sT)}, {s(sT)}, {WS_FH}',
                   f'v_lshrrev_b32 {v(vT)}, 5, v0', f'v_lshl_add_u32 {v(vT)}, {v(vT)}, 11, {s(sT)}',
                   f'v_bfe_u32 {v(vT + 1)}, v0, 3, 2', f'v_lshl_add_u32 {v(vPA)}, {v(vT + 1)}, 7, {v(vT)}'])
eb, est = 232, 240
kx = 216
cx_addr = flat([f's_mul_i32 {s(sT)}, {s(sW)}, {8 * 1280}', f's_add_u32 {s(sT)}, {s(sT)}, {L_CX}',
                f'v_lshrrev_b32 {v(vT)}, 4, v0', f'v_lshl_add_u32 {v(vT)}, {v(vT)}, 6, {v(vL16)}',
                f'v_add_u32 {v(vT)}, {s(sT)}, {v(vT)}',
                f's_lshl_b32 {s(sT)}, {s(sW)}, 10', f's_sub_u32 {s(sT)}, {L_XR + 4088 - 512}, {s(sT)}',
                f'v_sub_u32 {v(vT + 1)}, {s(sT)}, {v(vL8)}'])
cx_addr2 = flat([f's_mul_i32 {s(sT)}, {s(sW)}, {2 * 1280}', f's_add_u32 {s(sT)}, {s(sT)}, {L_CX}',
                 f'v_and_b32 {v(vT + 2)}, 3, v0', f'v_mul_u32_u24 {v(vT + 2)}, 320, {v(vT + 2)}',
                 f'v_lshrrev_b32 {v(vT + 3)}, 2, v0', f'v_lshl_add_u32 {v(vT + 2)}, {v(vT + 3)}, 4, {v(vT + 2)}',
                 f'v_add_u32 {v(vT + 2)}, {s(sT)}, {v(vT + 2)}'])
kx_reads = [[I(f'ds_read_b64 {v(kx + 4 * i + 2 * ch, 2)}, {v(vT + 1)} offset:{512 * (1 - i) + 4608 * ch}')] for i in range(2) for ch in range(2)]
for cl in range(4):
    sd = conv_reads(cl + 1) if cl < 3 else []
    m = interleave(conv_mfma(cl), sd, end=30)
    extra = []
    if cl == 0:
        extra = w2_take(2)
    if cl == 1:
        extra = w2_take(0.5) + [hflag] + w2_take(1.5) + [hpoll_addr]
    if cl == 2:
        extra = w2_take(2)
    if cl == 3:
        extra = w2_take(100) + [cx_addr] + kx_reads + [cx_addr2] + [[I(POLL_LD)]]
    E(interleave(m, extra))
E(stamp('conv'))

for cb_ in range(8):
    E(f'ds_write_b128 {v(vT)}, {v(cacc + 4 * cb_, 4)} offset:{1280 * cb_}')
E('s_waitcnt lgkmcnt(0)', 's_barrier')
cr = 88
for i in range(2):
    for sw in range(4):
        E(f'ds_read_b128 {v(cr + 16 * i + 4 * sw, 4)}, {v(vT + 2)} offset:{sw * 8 * 1280 + i * 1280}')
ku = 120
for i in range(2):
    for ch in range(2):
        k = kx + 4 * i + 2 * ch
        u = ku + 8 * i + 4 * ch
        E(f'v_and_b32 {v(u)}, 0xffff0000, {v(k + 1)}', f'v_lshlrev_b32 {v(u + 1)}, 16, {v(k + 1)}',
          f'v_and_b32 {v(u + 2)}, 0xffff0000, {v(k)}', f'v_lshlrev_b32 {v(u + 3)}, 16, {v(k)}')
E(stamp('cx'))
E(poll_check('h', POLL_CMP, POLL_LD))
E(stamp('hpoll'))
yo = 136
cep = []
for i in range(2):
    for ch in range(2):
        A, B = cr + 16 * i + 8 * ch, cr + 16 * i + 8 * ch + 4
        u = ku + 8 * i + 4 * ch
        cep += [[x] for x in flat([f'v_pk_add_f32 {v(A, 2)}, {v(A, 2)}, {v(B, 2)}', f'v_pk_add_f32 {v(A + 2, 2)}, {v(A + 2, 2)}, {v(B + 2, 2)}',
                                   [f'v_fmac_f32 {v(A + e)}, {s(sD + ch)}, {v(u + e)}' for e in range(4)],
                                   f'v_cvt_pk_bf16_f32 {v(yo + 4 * i + 2 * ch)}, {v(A)}, {v(A + 1)}',
                                   f'v_cvt_pk_bf16_f32 {v(yo + 4 * i + 2 * ch + 1)}, {v(A + 2)}, {v(A + 3)}'])]
    cep.append([I(f'buffer_store_dwordx4 {v(yo + 4 * i, 4)}, {v(vL16)}, {s(rWS, 4)}, {s(sOY)} offen offset:{1024 * i} sc1', tok=f'yst{i}')])
H0 = h_loads(0)
E(H0[:4])
E(interleave(cep, H0[4:]))
E(stamp('cepi'))

g2acc = [56, 72]


def g2_mfma(o):
    out = []
    acc = g2acc[o & 1]
    for kap in range(14):
        for t in range(4):
            d = v(acc + 4 * t, 4)
            c = '0' if kap == 0 else d
            out.append([I(f'v_mfma_f32_16x16x32_bf16 {d}, {a(16 * kap + 4 * t, 4)}, {v(vH[o] + 4 * kap, 4)}, {c}')])
    return out


def g2_write(o):
    acc = g2acc[o & 1]
    pre = flat([f's_add_u32 {s(sT)}, {s(sW)}, {1 + o}', f's_and_b32 {s(sT)}, {s(sT)}, 3', f's_mul_i32 {s(sT)}, {s(sT)}, 12288',
                f's_add_u32 {s(sT)}, {s(sT)}, {L_GX + 4096 * o}', f'v_add_u32 {v(vT)}, {s(sT)}, {v(vL16)}'])
    return [pre] + [[I(f'ds_write_b128 {v(vT)}, {v(acc + 4 * t, 4)} offset:{1024 * t}')] for t in range(4)]


eb = 4
est = 12
ex = 16
yt = 24
yflag = [I(f'buffer_store_dwordx2 {v(vN, 2)}, {v(vFL)}, {s(rWS, 4)}, {s(sFY)} offen sc1', after=['yst1'])]
ep_loads = [flat([f's_lshl_b32 {s(sT)}, {s(sW)}, 11', f's_add_u32 m0, {s(sT)}, {L_EP}', f's_lshl_b32 {s(sT2)}, {s(sCB)}, 7',
                  I(f'buffer_load_dwordx4 {v(vEPA)}, {s(rX, 4)}, 0 offen lds')]),
            [I(f'buffer_load_dwordx4 {v(vEPA + 1)}, {s(rX, 4)}, 0 offen offset:1024 lds', tok='epx')],
            flat([f'v_lshrrev_b32 {v(vT + 5)}, 4, v0', f'v_lshl_add_u32 {v(vT + 5)}, {v(vT + 5)}, 3, {s(sT2)}',
                  f's_lshl_b32 {s(sT)}, {s(sTILE)}, 8', f's_add_u32 {s(sT)}, {s(sT)}, {WS_STAT}',
                  f'buffer_load_dwordx4 {v(est, 4)}, {v(vSTA)}, {s(rWS, 4)}, {s(sT)} offen sc1'])]
ep_loads += [[I(f'global_load_dwordx2 {v(eb + 2 * t, 2)}, {v(vT + 5)}, {s(pB2, 2)} offset:{32 * t}')] for t in range(4)]
ypoll_addr = flat([f's_lshl_b32 {s(sT)}, {s(sCB)}, 14', f's_lshr_b32 {s(sCNT)}, {s(sTB)}, 2', f's_lshl_b32 {s(sCNT)}, {s(sCNT)}, 7',
                   f's_add_u32 {s(sT)}, {s(sT)}, {s(sCNT)}', f's_add_u32 {s(sT)}, {s(sT)}, {WS_FY}',
                   f'v_lshrrev_b32 {v(vPA)}, 1, v0', f'v_lshl_add_u32 {v(vPA)}, {v(vPA)}, 9, {s(sT)}'])
yl_addr = flat([f's_lshl_b32 {s(sT)}, {s(sTILE)}, 6',
                f's_lshl_b32 {s(sCNT)}, {s(sCB)}, 18', f's_add_u32 {s(sT)}, {s(sT)}, {s(sCNT)}', f's_add_u32 {s(sOY)}, {s(sT)}, {WS_Y}',
                f's_add_u32 {s(sOKV)}, {s(sOY)}, {16 * 8192}',
                f'v_lshrrev_b32 {v(vT + 1)}, 2, v0', f'v_lshlrev_b32 {v(vT + 1)}, 13, {v(vT + 1)}',
                f'v_and_b32 {v(vT + 2)}, 3, v0', f'v_lshl_add_u32 {v(vT + 1)}, {v(vT + 2)}, 4, {v(vT + 1)}'])
vED = 32
EDr = [32, 33, 34, 3]
ed_addr = flat([f's_lshl_b32 {s(sT)}, {s(sW)}, 11', f's_add_u32 {s(sT)}, {s(sT)}, {L_EP}',
                f'v_bfe_u32 {v(vT + 2)}, v0, 1, 3', f'v_lshrrev_b32 {v(vT + 3)}, 5, v0', f'v_xor_b32 {v(vT + 2)}, {v(vT + 2)}, {v(vT + 3)}',
                f'v_lshlrev_b32 {v(vT + 2)}, 4, {v(vT + 2)}', f'v_lshl_add_u32 {v(vT + 2)}, {v(vSTA)}, 3, {v(vT + 2)}',
                f'v_bfe_u32 {v(vT + 3)}, v0, 4, 1', f'v_lshl_add_u32 {v(vT + 2)}, {v(vT + 3)}, 3, {v(vT + 2)}',
                f'v_add_u32 {v(EDr[0])}, {s(sT)}, {v(vT + 2)}',
                [f'v_xor_b32 {v(EDr[t])}, {32 * t}, {v(EDr[0])}' for t in range(1, 4)],
                f'v_add_u32 {v(vT + 9)}, {s(sT)}, {v(vL16)}'])
sm = 96
xn = 112
tu = 128
ep_pre = [[I(f'ds_read_b64 {v(ex + 2 * t, 2)}, {v(EDr[t])}', after=['epx'])] for t in range(4)]
for t in range(4):
    for e in range(4):
        rx, rb = ex + 2 * t + (e >> 1), eb + 2 * t + (e >> 1)
        un = (lambda d, r: f'v_and_b32 {v(d)}, 0xffff0000, {v(r)}') if e & 1 else (lambda d, r: f'v_lshlrev_b32 {v(d)}, 16, {v(r)}')
        o_, n_ = sm + 4 * t + e, xn + 4 * t + e
        for x in [un(n_, rx), un(o_, rb), f'v_add_f32 {v(o_)}, {v(o_)}, {v(n_)}', f'v_sub_f32 {v(n_)}, {v(n_)}, {v(est)}',
                  f'v_mul_f32 {v(n_)}, {v(n_)}, {v(est + 1)}']:
            ep_pre.append([I(x)])

H1, H2, H3 = h_loads(1), h_loads(2), h_loads(3)
E(interleave(g2_mfma(0), H1 + H2[:8] + [yflag] + ep_loads))
E(stamp('g2t0'))
E(interleave(g2_mfma(1), H2[8:] + g2_write(0) + H3 + [ypoll_addr, ed_addr] + [[I(POLL_LD)]], start=1))
E(stamp('g2t1'))
yr = 88
E(interleave(g2_mfma(2), g2_write(1) + [yl_addr] + ep_pre[:40] + [poll_check('y', POLL_CMP, POLL_LD)] +
             [[I(f'buffer_load_dwordx4 {v(yr, 4)}, {v(vT + 1)}, {s(rWS, 4)}, {s(sOY)} offen sc1')],
              [I(f'buffer_load_dwordx4 {v(yr + 4, 4)}, {v(vT + 1)}, {s(rWS, 4)}, {s(sOKV)} offen sc1')]] + ep_pre[40:], start=3))
E(stamp('g2t2'))
M3 = g2_mfma(3)
E(interleave(M3[:8], g2_write(2), start=2))
E('s_waitcnt lgkmcnt(0)', 's_barrier')
pr = 144
sd = [flat([f's_mul_i32 {s(sT)}, {s(sW)}, 12288', f's_add_u32 {s(sT)}, {s(sT)}, {L_GX}', f'v_add_u32 {v(vT)}, {s(sT)}, {v(vL16)}'])]
for i in range(12):
    sd.append([I(f'ds_read_b128 {v(pr + 4 * i, 4)}, {v(vT)} offset:{1024 * i}')])
sd.append(flat([f'v_add_u32 {v(vT + 2)}, {s(sRB)}, {v(vL16)}',
                f'ds_write_b128 {v(vT + 2)}, {v(yr, 4)}', f'ds_write_b128 {v(vT + 2)}, {v(yr + 4, 4)} offset:1024']))
sd.append(flat([f'v_lshrrev_b32 {v(vT + 3)}, 3, v0', f'v_lshlrev_b32 {v(vT + 3)}, 6, {v(vT + 3)}',
                f'v_and_b32 {v(vT + 2)}, 3, v0', f'v_lshl_add_u32 {v(vT + 3)}, {v(vT + 2)}, 4, {v(vT + 3)}',
                f'v_bfe_u32 {v(vT + 2)}, v0, 2, 1', f'v_lshl_add_u32 {v(vT + 3)}, {v(vT + 2)}, 3, {v(vT + 3)}',
                f'v_add_u32 {v(vT + 3)}, {s(sRB)}, {v(vT + 3)}']))
for t in range(4):
    sd.append([I(f'ds_read_b64_tr_b16 {v(yt + 2 * t, 2)}, {v(vT + 3)} offset:{512 * t}')])
for j in range(3):
    for i in range(16):
        sd.append([I(f'v_add_f32 {v(sm + i)}, {v(sm + i)}, {v(pr + 16 * j + i)}')])
for t in range(4):
    for e in range(4):
        ry = yt + 2 * t + (e >> 1)
        un = (lambda d, r: f'v_and_b32 {v(d)}, 0xffff0000, {v(r)}') if e & 1 else (lambda d, r: f'v_lshlrev_b32 {v(d)}, 16, {v(r)}')
        b = tu + (e & 1)
        sd.append([I(un(b, ry))])
        sd.append([I(f'v_fmac_f32 {v(sm + 4 * t + e)}, {v(xn + 4 * t + e)}, {v(b)}')])
E(interleave(M3[8:], sd))
E(stamp('g2t3'))
acc = g2acc[1]
for t in range(4):
    E(f'v_pk_add_f32 {v(sm + 4 * t, 2)}, {v(sm + 4 * t, 2)}, {v(acc + 4 * t, 2)}',
      f'v_pk_add_f32 {v(sm + 4 * t + 2, 2)}, {v(sm + 4 * t + 2, 2)}, {v(acc + 4 * t + 2, 2)}',
      f'v_cvt_pk_bf16_f32 {v(yt + 2 * t)}, {v(sm + 4 * t)}, {v(sm + 4 * t + 1)}',
      f'v_cvt_pk_bf16_f32 {v(yt + 2 * t + 1)}, {v(sm + 4 * t + 2)}, {v(sm + 4 * t + 3)}',
      f'ds_write_b64 {v(EDr[t])}, {v(yt + 2 * t, 2)}')
E(f'ds_read_b128 {v(pr, 4)}, {v(vT + 9)}', f'ds_read_b128 {v(pr + 4, 4)}, {v(vT + 9)} offset:1024',
  f'buffer_store_dwordx4 {v(pr, 4)}, {v(vEPA)}, {s(rOUT, 4)}, 0 offen',
  f'buffer_store_dwordx4 {v(pr + 4, 4)}, {v(vEPA + 1)}, {s(rOUT, 4)}, 0 offen offset:1024')
if STAMPS:
    E(stamp('st'))
    E('s_waitcnt vmcnt(0)')
    E(stamp('end'))
    E(f's_memrealtime {s(sST, 2)}', 's_waitcnt lgkmcnt(0)', f'v_writelane_b32 {v(vSTMP)}, {s(sST)}, 63',
      f's_lshl2_add_u32 {s(sT)}, s2, {s(sW)}', f's_lshl_b32 {s(sT)}, {s(sT)}, 8', f's_add_u32 {s(sT)}, {s(sT)}, {WS_STAMP}',
      f'v_lshlrev_b32 {v(vT)}, 2, v0',
      f'buffer_store_dword {v(vSTMP)}, {v(vT)}, {s(rWS, 4)}, {s(sT)} offen')
E('Lend:', 's_endpgm')

assert w2_pos[0] == len(w2_stream)
main = insert_nops(merge_waits(insert_waits(prog)))
tl = insert_nops(tail)

HEADER = open('cdna_kernels/%s.s.ref' % NAME).read().split('; Override launch')[0]
out = HEADER
out += f'; @launch grid=(256,1,1) block=(256,1,1) lds={LDS_BYTES}\n'
if STAMPS:
    out += '; STAMPS ' + ' '.join(stamp_names) + '\n'
out += f'''.amdgcn_target "amdgcn-amd-amdhsa--gfx950"
.text
.globl {NAME}_kernel
.p2align 8
.type {NAME}_kernel,@function
{NAME}_kernel:
'''
out += emit(main) + '\n' + emit(tl) + '\nLcode_end:\n    s_endpgm\n'
out += f'''.section .rodata,"a"
.p2align 6
.amdhsa_kernel {NAME}_kernel
  .amdhsa_next_free_vgpr 512
  .amdhsa_next_free_sgpr 102
  .amdhsa_accum_offset 256
  .amdhsa_group_segment_fixed_size 0
  .amdhsa_kernarg_size 112
  .amdhsa_user_sgpr_count 2
  .amdhsa_user_sgpr_kernarg_segment_ptr 1
  .amdhsa_system_sgpr_workgroup_id_x 1
.end_amdhsa_kernel
'''
dst = [x for x in sys.argv[1:] if not x.startswith('--')]
path = dst[0] if dst else f'cdna_kernels/{NAME}.s'
open(path, 'w').write(out)
from collections import Counter
c = Counter(i.kind for i in main)
print(path, dict(c), 'nop states', sum(int(i.text.split()[1]) + 1 for i in main if i.kind == 'nop'))
```

```python
import struct
import sys
from asmlib import I, flat, insert_waits, merge_waits, insert_nops, interleave, emit

NAME = 'parallel_sum__ssm_conv_h3__mixer_channel_mlp__prompt'
STAMPS = '--stamps' in sys.argv


def f32(x):
    return '0x%08x' % struct.unpack('<I', struct.pack('<f', x))[0]


def v(n, k=1):
    return f'v{n}' if k == 1 else f'v[{n}:{n + k - 1}]'


def a(n, k=1):
    return f'a{n}' if k == 1 else f'a[{n}:{n + k - 1}]'


def s(n, k=1):
    return f's{n}' if k == 1 else f's[{n}:{n + k - 1}]'


WS_FKV, WS_FH, WS_FY, WS_STAT = 0x0, 0x20000, 0x40000, 0x60000
WS_STAMP = 0x80000
WS_KVT, WS_Y, WS_H, WS_END = 0x100000, 0x300000, 0x500000, 0xC00000
L_W1 = 0
L_KVS = 86016
L_KB = L_KVS + 20480
L_EP = 65536
L_CX = 73728
L_B = 114688
L_XS = L_B
L_HC = L_B
L_XR = L_HC + 16640
L_CS = L_XR + 9216
L_GX = L_B
LDS_BYTES = 163840

sW = 3
sPC = 4
sN = 6
sXCD, sLOC, sTB, sFS, sJ, sCB, sSIG, sT = 8, 9, 10, 11, 12, 13, 14, 15
pQ, pK, pV, pSH, pHS, pD, pBX, pW1, pB1, pW2, pB2, pOUT, pDBG, pWS = [16 + 2 * i for i in range(14)]
rX, rK, rV, rW1, rW2, rHS, rWS, rOUT = [44 + 4 * i for i in range(8)]
sOX = 76
sW1W = 77
sXH = 78
sXB = 79
sOW1 = 80
sLW1 = 81
sGK = 82
sBLK = 84
sOW2 = 85
sSIGX = 86
sOST = 87
sONE = 88
sM2 = 90
sST = 92
sD = 94
sOH = 96
sC8K = 97
sT2 = 98
sCNT = 99
sRB = 100
sTH = 101
sHL = 48
sFKV, sFH, sFY, sOKV = 52, 53, 54, 55
sOY = 28
sTILE = 29
sBP = 16

vL16, vL8 = 1, 2
vXD = 3
vXR = 7
vWF = 9
vAB = 16
vA = 19
vW2 = 22
vB = 26
vG = 30
vF = 34
vFL = 35
vN = 36
vP = 38
vPA = 40
vSTMP = 41
vDUM = 42
vT = 44
vRING = 56
vACC = 88
vXF = 144
aCS, aSEL = 208, 224

prog = []
tail = []
stamp_n = [0]
stamp_names = []


def E(*x):
    prog.extend(flat(x))


def stamp(name):
    if not STAMPS:
        return []
    n = stamp_n[0]
    stamp_n[0] += 1
    stamp_names.append(name)
    return flat([f's_memtime {s(sST, 2)}', 's_waitcnt lgkmcnt(0)', f'v_writelane_b32 {v(vSTMP)}, {s(sST)}, {n}'])


def srd(r, p, nbytes):
    return [f's_mov_b32 {s(r)}, {s(p)}', f's_and_b32 {s(r + 1)}, {s(p + 1)}, 0xffff',
            f's_mov_b32 {s(r + 2)}, {nbytes}', f's_mov_b32 {s(r + 3)}, 0x20000']


slow_n = [0]


def poll_check(name, cmp, loads):
    idx = slow_n[0]
    slow_n[0] += 1
    tail.extend(flat([
        f'Lslow_{name}:', f's_mov_b32 {s(sCNT)}, 0',
        f'Lloop_{name}:', 's_sleep 1', loads, 's_waitcnt vmcnt(0)', cmp,
        f's_add_u32 {s(sCNT)}, {s(sCNT)}, 1',
        ([f'v_writelane_b32 {v(vSTMP)}, {s(sCNT)}, {48 + idx}'] if STAMPS else []),
        f's_cmp_ge_u32 {s(sCNT)}, 20000',
        f's_cbranch_scc1 Lback_{name}', 's_nop 4', f's_cbranch_vccnz Lloop_{name}',
        f's_branch Lback_{name}']))
    return flat([cmp, f's_cbranch_vccnz Lslow_{name}', f'Lback_{name}:'])


POLL_LD = f'buffer_load_dwordx2 {v(vP, 2)}, {v(vPA)}, {s(rWS, 4)}, 0 offen sc1'
POLL_CMP = f'v_cmp_ne_u64 vcc, {s(sN, 2)}, {v(vP, 2)}'

tL15, tG, tR4, tC4, tL3, tL7 = 240, 241, 242, 243, 244, 245
t0, t1, t2, t3 = 246, 247, 248, 249
vK0, vK1, vKT, vSHA = 250, 251, 252, 253
vSH = 254
E(f's_cmp_ge_u32 s2, 0x100', 's_cbranch_scc1 Lend')
E(f's_load_dwordx16 {s(16, 16)}, s[0:1], 0', f's_load_dwordx8 {s(32, 8)}, s[0:1], 64',
  f's_load_dwordx4 {s(40, 4)}, s[0:1], 96')
if STAMPS:
    E(f'v_mov_b32 {v(vSTMP)}, 0', f's_memrealtime {s(sST, 2)}', 's_waitcnt lgkmcnt(0)', f'v_writelane_b32 {v(vSTMP)}, {s(sST)}, 62')
E(stamp('start'))
E(f'v_lshrrev_b32 {v(t0)}, 6, v0', f'v_lshlrev_b32 {v(vDUM)}, 7, v0',
  f'v_readfirstlane_b32 {s(sW)}, {v(t0)}',
  f'v_and_b32 v0, 63, v0',
  f's_and_b32 {s(sXCD)}, s2, 7', f's_lshr_b32 {s(sLOC)}, s2, 3',
  f'v_lshrrev_b32 {v(tL3)}, 3, v0', f'v_and_b32 {v(tL7)}, 7, v0',
  f'v_lshlrev_b32 {v(vL16)}, 4, v0', f'v_lshlrev_b32 {v(vL8)}, 3, v0',
  f's_movk_i32 {s(sC8K)}, 0x2000',
  f's_lshl2_add_u32 {s(sT)}, {s(sLOC)}, {s(sW)}', f's_lshl_b32 {s(sT)}, {s(sT)}, 14',
  f's_lshl_b32 {s(sT2)}, {s(sXCD)}, 7', f's_add_u32 {s(sT)}, {s(sT)}, {s(sT2)}',
  f'v_lshl_add_u32 {v(t0)}, {v(tL3)}, 10, {s(sT)}', f'v_lshl_add_u32 {v(vK1)}, {v(tL7)}, 4, {v(t0)}',
  f'v_subrev_u32 {v(vK0)}, {s(sC8K)}, {v(vK1)}',
  f's_lshl_b32 {s(sT2)}, {s(sXCD)}, 9', f'v_add_u32 {v(vSHA)}, {s(sT2)}, {v(vL8)}',
  f's_mul_i32 {s(sBLK)}, {s(sW)}, 5120', f's_add_u32 {s(sBLK)}, {s(sBLK)}, {L_KVS}',
  f's_and_b32 {s(sJ)}, {s(sLOC)}, 7',
  f's_lshr_b32 {s(sT)}, {s(sLOC)}, 3',
  f's_lshr_b32 {s(sTB)}, {s(sXCD)}, 1', f's_lshl2_add_u32 {s(sTB)}, {s(sTB)}, {s(sT)}',
  f's_lshr_b32 {s(sCB)}, {s(sJ)}, 1',
  f's_add_u32 {s(sSIG)}, {s(sT)}, {s(sCB)}', f's_and_b32 {s(sSIG)}, {s(sSIG)}, 3', f's_mov_b32 {s(sSIGX)}, {s(sSIG)}',
  f's_and_b32 {s(sT)}, {s(sXCD)}, 1',
  f's_lshl3_add_u32 {s(sFS)}, {s(sT)}, {s(sJ)}',
  f's_lshl2_add_u32 {s(sCB)}, {s(sT)}, {s(sCB)}',
  f's_and_b32 {s(sTH)}, {s(sJ)}, 1',
  f's_mul_i32 {s(sLW1)}, {s(sW)}, 7168', f's_mul_i32 {s(sW1W)}, {s(sW)}, {32 * 3584}',
  f's_lshl_b32 {s(sRB)}, {s(sW)}, 12',
  f's_lshr_b32 {s(sXH)}, {s(sW)}, 1', f's_lshl_b32 {s(sXH)}, {s(sXH)}, 7',
  f's_mul_i32 {s(sXB)}, {s(sW)}, 12288', f's_add_u32 {s(sXB)}, {s(sXB)}, {L_XS}',
  f'v_and_b32 {v(tL15)}, 15, v0', f'v_lshrrev_b32 {v(tG)}, 4, v0',
  f'v_bfe_u32 {v(tR4)}, v0, 2, 2', f'v_and_b32 {v(tC4)}, 3, v0')
E(f's_mul_i32 {s(sT)}, {s(sFS)}, 224', f's_add_u32 {s(sT)}, {s(sT)}, 4096',
  f's_lshl_b32 {s(sT2)}, {s(sTH)}, 5', f's_add_u32 {s(sT2)}, {s(sT)}, {s(sT2)}',
  f's_movk_i32 {s(sOW2)}, 3584',
  f'v_lshrrev_b32 {v(t0)}, 2, v0', f'v_mul_u32_u24 {v(t0)}, {s(sOW2)}, {v(t0)}',
  f'v_lshrrev_b32 {v(t1)}, 5, v0', f'v_lshlrev_b32 {v(t2)}, 1, {v(t1)}', f'v_xor_b32 {v(t2)}, {v(tC4)}, {v(t2)}',
  f'v_lshl_add_u32 {v(t0)}, {v(t2)}, 4, {v(t0)}',
  f'v_add_u32 {v(vWF)}, {s(sT2)}, {v(t0)}')
for i in range(1, 6):
    sec, hh = i >> 1, i & 1
    d = 64 * sec + 57344 * hh - 1024 * (i & 3)
    E(f'v_add_u32 {v(vWF + i)}, {d & 0xffffffff}, {v(vWF)}')
E(f's_cmp_eq_u32 {s(sTH)}, 0', f's_cselect_b32 {s(sT2)}, 192, 0', f's_add_u32 {s(sT2)}, {s(sT)}, {s(sT2)}',
  f's_sub_u32 {s(sT2)}, {s(sT2)}, 2048',
  f'v_bfe_u32 {v(t0)}, v0, 2, 3', f'v_lshl_add_u32 {v(t0)}, {v(t1)}, 4, {v(t0)}',
  f'v_bfe_u32 {v(t1)}, v0, 1, 1', f'v_lshl_add_u32 {v(t0)}, {v(t1)}, 3, {v(t0)}',
  f'v_mul_u32_u24 {v(t0)}, {s(sOW2)}, {v(t0)}',
  f'v_and_b32 {v(t1)}, 1, v0', f'v_lshl_add_u32 {v(t0)}, {v(t1)}, 4, {v(t0)}',
  f'v_add_u32 {v(vWF + 6)}, {s(sT2)}, {v(t0)}')
E(f's_lshl2_add_u32 {s(sT)}, {s(sTB)}, {s(sW)}', f's_lshl_b32 {s(sT)}, {s(sT)}, 15',
  f'v_xor_b32 {v(t0)}, {v(tL7)}, {v(tG)}', f'v_lshlrev_b32 {v(t0)}, 4, {v(t0)}',
  f'v_lshl_add_u32 {v(t3)}, {v(tL3)}, 10, {v(t0)}',
  f'v_add_u32 {v(vXD)}, {s(sT)}, {v(t3)}',
  f'v_xor_b32 {v(t0)}, 64, {v(vXD)}', f'v_add_u32 {v(vXD + 1)}, 7168, {v(t0)}',
  f'v_add_u32 {v(vXD + 2)}, 14336, {v(vXD)}', f'v_add_u32 {v(vXD + 3)}, 14336, {v(vXD + 1)}')
E(srd(rK, pK, 0x200000), srd(rV, pV, 0x200000))
E(f's_mov_b32 m0, {s(sBLK)}',
  f's_sub_u32 {s(rW1)}, {s(pW1)}, 4096',
  I(f'buffer_load_dwordx4 {v(vK0)}, {s(rK, 4)}, 0 offen lds', tok='kv0'),
  f's_add_u32 m0, {s(sBLK)}, 1024',
  f's_subb_u32 {s(rW1 + 1)}, {s(pW1 + 1)}, 0'.replace('s_subb_u32', 's_mov_b32').replace(', 0', ''),
  I(f'buffer_load_dwordx4 {v(vK1)}, {s(rK, 4)}, 0 offen lds', tok='kv1'),
  f's_add_u32 m0, {s(sBLK)}, 2048',
  f's_mov_b32 {s(rW1 + 2)}, {512 * 3584 + 4096}',
  I(f'buffer_load_dwordx4 {v(vK1)}, {s(rK, 4)}, {s(sC8K)} offen lds', tok='kv2'),
  f's_add_u32 m0, {s(sBLK)}, 3072',
  f's_mov_b32 {s(rW1 + 3)}, 0x20000',
  I(f'buffer_load_dwordx4 {v(vK1)}, {s(rV, 4)}, 0 offen lds', tok='kv3'),
  f's_add_u32 m0, {s(sBLK)}, 4096',
  f's_cmp_lt_u32 {s(pW1)}, 4096',
  I(f'buffer_load_dwordx4 {v(vK1)}, {s(rV, 4)}, {s(sC8K)} offen lds', tok='kv4'),
  f's_subb_u32 {s(rW1 + 1)}, {s(rW1 + 1)}, 0', f's_and_b32 {s(rW1 + 1)}, {s(rW1 + 1)}, 0xffff',
  I(f'global_load_dwordx2 {v(vSH, 2)}, {v(vSHA)}, {s(pSH, 2)}', tok='sh'))
E(srd(rX, pQ, 0x200000))


def w1_dma(st):
    base = L_W1 + st * 28672
    items = []
    pre = [f's_mul_i32 {s(sOW1)}, {s(sSIG)}, {4 * 32 * 3584}', f's_add_u32 m0, {s(sLW1)}, {base}',
           f's_add_u32 {s(sOW1)}, {s(sOW1)}, {s(sW1W)}']
    for i in range(7):
        if i == 4:
            pre = [f's_add_u32 m0, {s(sLW1)}, {base + 4096}', f's_add_u32 {s(sSIG)}, {s(sSIG)}, 1', f's_and_b32 {s(sSIG)}, {s(sSIG)}, 3']
        items.append(flat(pre + [I(f'buffer_load_dwordx4 {v(vWF + i)}, {s(rW1, 4)}, {s(sOW1)} offen offset:{1024 * (i & 3)} lds',
                                   tok=f'w1_{st}_{i}')]))
        pre = []
    return items


def x_dma(h):
    items = []
    if h & 1 == 0:
        pre = [f's_add_u32 m0, {s(sXB)}, {4096 * (h % 3)}', f's_lshl_b32 {s(sOX)}, {s(sSIGX)}, 8', f's_or_b32 {s(sOX)}, {s(sOX)}, {s(sXH)}']
    else:
        pre = [f's_add_u32 m0, {s(sXB)}, {4096 * (h % 3)}', f's_xor_b32 {s(sOX)}, {s(sOX)}, 128',
               f's_add_u32 {s(sSIGX)}, {s(sSIGX)}, 1', f's_and_b32 {s(sSIGX)}, {s(sSIGX)}, 3']
    for i in range(4):
        aft = [f'xr_{h - 3}_3'] if (h >= 3 and i == 0) else []
        items.append(flat(pre + [I(f'buffer_load_dwordx4 {v(vXD + i)}, {s(rX, 4)}, {s(sOX)} offen offset:{1024 * i} lds',
                                   tok=f'xd_{h}_{i}', after=aft)]))
        pre = []
    return items


def xf(st, p, tt):
    h = 2 * st + (p >> 1)
    return vXF + 16 * (h % 4) + ((p & 1) * 2 + tt) * 4


def x_read(h):
    out = []
    n = 0
    for pp in range(2):
        for tt in range(2):
            out.append(I(f'ds_read_b128 {v(xf(h >> 1, 2 * (h & 1) + pp, tt), 4)}, {v(vXR + pp)} offset:{4096 * (h % 3) + 2048 * tt}',
                         tok=f'xr_{h}_{n}', after=[f'xd_{h}_3']))
            n += 1
    return out


E(w1_dma(0))
E(x_dma(0))
sx = 224
E(f's_lshl4_add_u32 {s(sT)}, {s(sTB)}, {s(sFS)}', f's_lshl2_add_u32 {s(sT)}, {s(sT)}, {s(sW)}',
  f's_lshl_b32 {s(sOST)}, {s(sT)}, 5', f's_lshl_b32 {s(sT)}, {s(sT)}, 11',
  f'buffer_load_dwordx4 {v(sx, 4)}, {v(vL16)}, {s(rX, 4)}, {s(sT)} offen',
  f'buffer_load_dwordx4 {v(sx + 4, 4)}, {v(vL16)}, {s(rX, 4)}, {s(sT)} offen offset:1024',
  f's_add_u32 {s(sOST)}, {s(sOST)}, {WS_STAT}')
E(srd(rWS, pWS, WS_END),
  f's_memrealtime {s(sN, 2)}',
  f'v_cmp_eq_u32 vcc, 0, v0', f'v_mov_b32 {v(t0)}, 0x80000000',
  f's_mov_b32 {s(rOUT)}, {s(pDBG)}', f's_and_b32 {s(rOUT + 1)}, {s(pDBG + 1)}, 0xffff',
  f'v_cndmask_b32_e64 {v(vFL)}, {v(t0)}, 0, vcc',
  f's_or_b32 {s(sT)}, s2, {s(sW)}', f's_cmp_eq_u32 {s(sT)}, 0', f's_cselect_b32 {s(rOUT + 2)}, 8, 0',
  f's_mov_b32 {s(rOUT + 3)}, 0x20000',
  's_waitcnt lgkmcnt(0)', f's_or_b32 {s(sT)}, {s(sN)}, 1',
  f'v_mov_b32 {v(vN)}, {s(sT)}', f'v_mov_b32 {v(vN + 1)}, {s(sN + 1)}',
  f'buffer_store_dwordx2 {v(vN, 2)}, {v(vFL)}, {s(rOUT, 4)}, 0 offen sc1')
E(f's_getpc_b64 {s(sPC, 2)}', 'Lpc:',
  f'v_min_u32 {v(vDUM)}, Lcode_end-Lpc-4, {v(vDUM)}',
  f'global_load_dword {v(vDUM)}, {v(vDUM)}, {s(sPC, 2)}')

setup = []


def S(*x):
    setup.extend([[i] for i in flat(x)])


S(f'v_lshl_add_u32 {v(t0)}, {v(tG)}, 3, {v(tR4)}', f'v_lshlrev_b32 {v(t0)}, 6, {v(t0)}',
  f'v_lshl_add_u32 {v(t0)}, {v(tC4)}, 3, {v(t0)}',
  f'v_and_b32 {v(t1)}, 1, {v(tG)}', f'v_lshlrev_b32 {v(t1)}, 5, {v(t1)}',
  f'v_add_u32 {v(vAB)}, {v(t0)}, {v(t1)}', f'v_xor_b32 {v(vAB + 1)}, 32, {v(vAB)}',
  f'v_lshrrev_b32 {v(t2)}, 1, {v(tG)}', f'v_lshl_add_u32 {v(t2)}, {v(t2)}, 3, {v(tR4)}', f'v_lshlrev_b32 {v(t2)}, 6, {v(t2)}',
  f'v_lshl_add_u32 {v(t2)}, {v(tC4)}, 3, {v(t2)}', f'v_add_u32 {v(vAB + 2)}, {v(t2)}, {v(t1)}')
S(f's_and_b32 {s(sT)}, {s(sW)}, 1', f's_lshl_b32 {s(sT)}, {s(sT)}, 2',
  f'v_lshrrev_b32 {v(t0)}, 1, {v(tL15)}', f'v_xor_b32 {v(t0)}, {v(t0)}, {v(tG)}', f'v_xor_b32 {v(t0)}, {s(sT)}, {v(t0)}',
  f'v_lshlrev_b32 {v(t0)}, 4, {v(t0)}', f'v_lshl_add_u32 {v(t0)}, {v(tL15)}, 7, {v(t0)}',
  f'v_add_u32 {v(vXR)}, {s(sXB)}, {v(t0)}', f'v_xor_b32 {v(vXR + 1)}, 64, {v(vXR)}')
S(f'v_lshlrev_b32 {v(t0)}, 7, {v(tR4)}', f'v_lshl_add_u32 {v(t0)}, {v(tG)}, 5, {v(t0)}',
  f'v_lshl_add_u32 {v(t0)}, {v(tC4)}, 3, {v(t0)}', f'v_add_u32 {v(vKT)}, {s(sBLK)}, {v(t0)}')
S(f's_mov_b32 {s(sONE)}, 0x3f803f80', f'v_mov_b32 {v(t1)}, {s(sONE)}')
for u in range(7):
    S(f'v_cmp_eq_u32 vcc, {u}, {v(tL15)}', f's_xor_b32 {s(sT)}, {s(sW)}, {u & 3}', f's_mul_i32 {s(sBP + (u & 3))}, {s(sT)}, 7168',
      f'v_cndmask_b32 {v(t2)}, 0, {v(t1)}, vcc',
      [f'v_accvgpr_write_b32 {a(aSEL + 4 * u + i)}, {v(t2)}' for i in range(4)])
S(srd(rW2, pW2, 1792 * 1024), srd(rOUT, pOUT, 0x200000))
S(f's_lshl_b32 {s(sT)}, {s(sXCD)}, 5', f's_add_u32 {s(sT)}, {s(sT)}, {s(sLOC)}',
  f's_lshl_b32 {s(sT2)}, {s(sT)}, 2',
  f's_load_dword {s(sD)}, {s(pD, 2)}, {s(sT2)}',
  f's_add_u32 {s(sT2)}, {s(sT2)}, {s(sW)}', f's_lshl_b32 {s(sFKV)}, {s(sT2)}, 7', f's_add_u32 {s(sFY)}, {s(sFKV)}, {WS_FY}',
  f's_lshl_b32 {s(sOY)}, {s(sT2)}, 11', f's_add_u32 {s(sOY)}, {s(sOY)}, {WS_Y}',
  f's_lshr_b32 {s(sT2)}, {s(sT2)}, 1', f's_lshl_b32 {s(sOKV)}, {s(sT2)}, 12',
  f's_add_u32 {s(rHS)}, {s(pHS)}, {s(sOKV)}', f's_addc_u32 {s(rHS + 1)}, {s(pHS + 1)}, 0',
  f's_and_b32 {s(rHS + 1)}, {s(rHS + 1)}, 0xffff', f's_movk_i32 {s(rHS + 2)}, 0x1000', f's_mov_b32 {s(rHS + 3)}, 0x20000',
  f's_add_u32 {s(sOKV)}, {s(sOKV)}, {WS_KVT}')
S(f's_mul_i32 {s(sT)}, {s(sW)}, {448 * 1024}', f's_lshl_b32 {s(sT2)}, {s(sCB)}, 7', f's_add_u32 {s(sT)}, {s(sT)}, {s(sT2)}',
  f'v_lshlrev_b32 {v(t0)}, 1, {v(tG)}', f'v_xor_b32 {v(t0)}, {v(tL7)}, {v(t0)}', f'v_lshlrev_b32 {v(t0)}, 4, {v(t0)}',
  f'v_lshl_add_u32 {v(t0)}, {v(tL3)}, 10, {v(t0)}', f'v_add_u32 {v(vW2)}, {s(sT)}, {v(t0)}',
  [f'v_add_u32 {v(vW2 + i)}, {7168 * i}, {v(vW2)}' for i in range(1, 4)])
S(f'v_lshl_add_u32 {v(t0)}, {v(tG)}, 2, {v(tR4)}', f'v_bfe_u32 {v(t1)}, {v(t0)}, 1, 2',
  f'v_lshlrev_b32 {v(t0)}, 7, {v(t0)}', f'v_lshl_add_u32 {v(t0)}, {v(tC4)}, 3, {v(t0)}',
  f'v_lshl_add_u32 {v(t0)}, {v(t1)}, 5, {v(t0)}', f'v_add_u32 {v(vB)}, {s(sRB)}, {v(t0)}',
  [f'v_xor_b32 {v(vB + t)}, {32 * t}, {v(vB)}' for t in range(1, 4)])
S(f's_lshr_b32 {s(sT)}, {s(sW)}, 1', f's_mul_i32 {s(sT2)}, {s(sT)}, 8320', f's_and_b32 {s(sCNT)}, {s(sW)}, 1',
  f's_lshl_b32 {s(sCNT)}, {s(sCNT)}, 8',
  f's_add_u32 {s(sT2)}, {s(sT2)}, {s(sCNT)}', f's_add_u32 {s(sT2)}, {s(sT2)}, {L_HC + 4}',
  f'v_and_b32 {v(t0)}, 1, v0', f'v_mul_u32_u24 {v(t0)}, 4160, {v(t0)}',
  f'v_lshrrev_b32 {v(t1)}, 1, {v(tL15)}', f'v_lshl_add_u32 {v(t0)}, {v(t1)}, 2, {v(t0)}',
  f'v_lshl_add_u32 {v(t0)}, {v(tG)}, 4, {v(t0)}', f'v_add_u32 {v(vG)}, {s(sT2)}, {v(t0)}',
  [f'v_add_u32 {v(vG + k)}, {1024 * k}, {v(vG)}' for k in range(1, 4)],
  f's_mul_i32 {s(sT2)}, {s(sT)}, 4608', f's_add_u32 {s(sT2)}, {s(sT2)}, {s(sCNT)}', f's_add_u32 {s(sT2)}, {s(sT2)}, {L_XR + 480}',
  f'v_lshlrev_b32 {v(t0)}, 4, {v(tG)}', f'v_lshlrev_b32 {v(t1)}, 5, {v(tL15)}', f'v_sub_u32 {v(t0)}, {v(t0)}, {v(t1)}',
  f'v_add_u32 {v(vF)}, {s(sT2)}, {v(t0)}')
K1 = -2.0 * 1.4426950408889634 * 0.7978845608028654
S(f's_mov_b32 {s(sGK)}, {f32(K1)}', f's_mov_b32 {s(sGK + 1)}, {f32(K1 * 0.044715)}')
S(f's_lshl2_add_u32 {s(sT)}, {s(sTB)}, {s(sW)}',
  f's_lshl4_add_u32 {s(sT2)}, {s(sT)}, {s(sFS)}', f's_lshl_b32 {s(sFH)}, {s(sT2)}, 7', f's_add_u32 {s(sFH)}, {s(sFH)}, {WS_FH}',
  f's_lshl_b32 {s(sT2)}, {s(sT)}, 5', f's_add_u32 {s(sT2)}, {s(sT2)}, {s(sFS)}', f's_mul_i32 {s(sOH)}, {s(sT2)}, 3584',
  f's_add_u32 {s(sOH)}, {s(sOH)}, {WS_H}',
  f's_lshl1_add_u32 {s(sCNT)}, {s(sTB)}, {s(sTH)}', f's_lshl2_add_u32 {s(sTILE)}, {s(sCNT)}, {s(sW)}')
for o in range(4):
    S(f's_add_u32 {s(sT)}, {s(sW)}, {1 + o}', f's_and_b32 {s(sT)}, {s(sT)}, 3',
      f's_lshl2_add_u32 {s(sT)}, {s(sCNT)}, {s(sT)}', f's_lshl2_add_u32 {s(sT)}, {s(sT)}, {s(sW)}',
      f's_mul_i32 {s(sHL + o)}, {s(sT)}, {4 * 3584}', f's_add_u32 {s(sHL + o)}, {s(sHL + o)}, {WS_H}')
vKBR, vKBS, vB1A, vG16, vEPA, vSTA, vHO = vT, vT + 1, vT + 3, vT + 4, vT + 6, vT + 8, vT + 9
S(f's_lshl_b32 {s(sT)}, {s(sW)}, 11', f's_add_u32 {s(sT)}, {s(sT)}, {L_KB}', f'v_add_u32 {v(vKBR)}, {s(sT)}, {v(vL16)}',
  f's_lshl2_add_u32 {s(sT)}, {s(sXCD)}, {s(sW)}', f's_lshl_b32 {s(sT)}, {s(sT)}, 16',
  f's_sub_u32 {s(sT2)}, 31, {s(sLOC)}', f's_lshl_b32 {s(sT2)}, {s(sT2)}, 7', f's_add_u32 {s(sT)}, {s(sT)}, {s(sT2)}',
  f's_add_u32 {s(sT)}, {s(sT)}, {WS_KVT}',
  f'v_xor_b32 {v(t0)}, {v(tL7)}, {v(tL3)}', f'v_lshlrev_b32 {v(t0)}, 4, {v(t0)}', f'v_lshl_add_u32 {v(t0)}, {v(tL3)}, 12, {v(t0)}',
  f'v_add_u32 {v(vKBS)}, {s(sT)}, {v(t0)}', f'v_add_u32 {v(vKBS + 1)}, 0x8000, {v(vKBS)}')
S(f's_mul_i32 {s(sT)}, {s(sFS)}, 224', f's_lshl_b32 {s(sT2)}, {s(sTH)}, 5', f's_add_u32 {s(sT2)}, {s(sT2)}, {s(sT)}',
  f'v_lshl_add_u32 {v(t0)}, {v(tL15)}, 5, {s(sT2)}',
  f's_cmp_eq_u32 {s(sTH)}, 0', f's_cselect_b32 {s(sT2)}, 192, 0', f's_add_u32 {s(sT2)}, {s(sT2)}, {s(sT)}',
  f'v_cmp_gt_u32 vcc, 6, {v(tL15)}', f'v_mov_b32 {v(t1)}, {s(sT2)}', f'v_lshlrev_b32 {v(vG16)}, 4, {v(tG)}',
  f'v_cndmask_b32 {v(t0)}, {v(t1)}, {v(t0)}, vcc',
  f'v_lshl_add_u32 {v(vB1A)}, {v(tG)}, 3, {v(t0)}',
  f's_lshl_b32 {s(sT)}, {s(sXCD)}, 14', f's_lshr_b32 {s(sT2)}, {s(sLOC)}, 3', f's_lshl_b32 {s(sT2)}, {s(sT2)}, 7',
  f's_add_u32 {s(sT)}, {s(sT)}, {s(sT2)}',
  f'v_lshrrev_b32 {v(t0)}, 1, v0', f'v_lshl_add_u32 {v(vPA)}, {v(t0)}, 9, {s(sT)}',
  f's_lshl_b32 {s(sT)}, {s(sTILE)}, 14', f's_lshl_b32 {s(sT2)}, {s(sCB)}, 7', f's_add_u32 {s(sT)}, {s(sT)}, {s(sT2)}',
  f'v_add_u32 {v(vEPA)}, {s(sT)}, {v(t3)}', f'v_xor_b32 {v(t0)}, 64, {v(vEPA)}', f'v_add_u32 {v(vEPA + 1)}, 7168, {v(t0)}',
  f'v_lshlrev_b32 {v(vSTA)}, 4, {v(tL15)}',
  f's_and_b32 {s(sT)}, {s(sW)}, 1', f's_lshl_b32 {s(sT)}, {s(sT)}, 11', f'v_add_u32 {v(vHO)}, {s(sT)}, {v(vL16)}')
glued = []
for it in setup:
    if glued and ('scc' in it[0].rd):
        glued[-1] = glued[-1] + it
    else:
        glued.append(it)
E(interleave(glued, x_dma(1) + w1_dma(1) + x_dma(2)))
E(stamp('setup'))

kq = 56
vq = 66
kf = 76
sf = 96
kvv = 100
vu = 116
kvp = 120
for q in range(5):
    E(I(f'ds_read_b64_tr_b16 {v(kq + 2 * q, 2)}, {v(vKT)} offset:{(4 + 4 * q) * 128}', after=['kv4']))
for q in range(4):
    E(f'ds_read_b64_tr_b16 {v(vq + 2 * q, 2)}, {v(vKT)} offset:{3072 + 512 * q}')
E(f's_and_b32 {s(sD + 1)}, {s(sD)}, 0xffff0000', f's_lshl_b32 {s(sD)}, {s(sD)}, 16')
E(f'v_lshlrev_b32 {v(sf)}, 16, {v(vSH)}', f'v_and_b32 {v(sf + 1)}, 0xffff0000, {v(vSH)}',
  f'v_lshlrev_b32 {v(sf + 2)}, 16, {v(vSH + 1)}', f'v_and_b32 {v(sf + 3)}, 0xffff0000, {v(vSH + 1)}')
for i in range(10):
    if i > 0:
        E(f'v_lshlrev_b32 {v(kf + 2 * i)}, 16, {v(kq + i)}')
    E(f'v_and_b32 {v(kf + 2 * i + 1)}, 0xffff0000, {v(kq + i)}')
for t in range(16):
    E(f'v_mul_f32 {v(kvv + t)}, {v(kf + t + 1)}, {v(sf + 3)}')
for j in (2, 1, 0):
    for t in range(16):
        E(f'v_fmac_f32 {v(kvv + t)}, {v(kf + t + 4 - j)}, {v(sf + j)}')
for i in range(8):
    E(f'v_lshlrev_b32 {v(vu)}, 16, {v(vq + i)}', f'v_and_b32 {v(vu + 1)}, 0xffff0000, {v(vq + i)}',
      f'v_pk_mul_f32 {v(kvv + 2 * i, 2)}, {v(kvv + 2 * i, 2)}, {v(vu, 2)}')
for d in range(8):
    E(f'v_cvt_pk_bf16_f32 {v(kvp + d)}, {v(kvv + 15 - 2 * d)}, {v(kvv + 14 - 2 * d)}')
E(f's_sub_u32 {s(sT)}, 3, {s(sW)}', f's_lshl_b32 {s(sT)}, {s(sT)}, 1',
  f'v_xor_b32 {v(t0)}, {s(sT)}, {v(tL7)}', f'v_lshlrev_b32 {v(t0)}, 4, {v(t0)}', f'v_lshl_add_u32 {v(t0)}, v0, 7, {v(t0)}',
  f'v_add_u32 {v(t0)}, {L_KB}, {v(t0)}', f'v_xor_b32 {v(t1)}, 16, {v(t0)}',
  f'ds_write_b128 {v(t0)}, {v(kvp, 4)}', I(f'ds_write_b128 {v(t1)}, {v(kvp + 4, 4)}', tok='kbw'))
E(stamp('kv'))
E(f'v_mov_b32 {v(vT + 10)}, 0')
NONCE_LD = f'global_load_dwordx2 {v(vN, 2)}, {v(vT + 10)}, {s(pDBG, 2)} sc1'
E(NONCE_LD)
rec = 232
q = 236
for i in range(4):
    c = '0' if i == 0 else None
    for r in range(2):
        E(f'v_dot2_f32_bf16 {v(q + r)}, {v(sx + 4 * r + i)}, {s(sONE)}, {c or v(q + r)}',
          f'v_dot2_f32_bf16 {v(q + 2 + r)}, {v(sx + 4 * r + i)}, {v(sx + 4 * r + i)}, {c or v(q + 2 + r)}')
E(f'v_permlane32_swap_b32 {v(q)}, {v(q + 1)}', f'v_permlane32_swap_b32 {v(q + 2)}, {v(q + 3)}',
  f'v_add_f32 {v(q)}, {v(q)}, {v(q + 1)}', f'v_add_f32 {v(q + 2)}, {v(q + 2)}, {v(q + 3)}',
  f'v_and_b32 {v(t0)}, 31, v0', f'v_cmp_eq_u32 vcc, 0, {v(t0)}',
  f'v_permlane16_swap_b32 {v(q)}, {v(q + 2)}', f'v_add_f32 {v(q)}, {v(q)}, {v(q + 2)}',
  f'v_lshrrev_b32 {v(t0)}, 1, v0', f'v_mov_b32 {v(t1)}, 0x80000000',
  f'v_add_f32_dpp {v(q)}, {v(q)}, {v(q)} row_ror:8 row_mask:0xf bank_mask:0xf',
  f'v_cndmask_b32 {v(vT + 11)}, {v(t1)}, {v(t0)}, vcc',
  f'v_add_f32_dpp {v(q)}, {v(q)}, {v(q)} row_ror:4 row_mask:0xf bank_mask:0xf',
  f'v_add_f32_dpp {v(q)}, {v(q)}, {v(q)} row_ror:2 row_mask:0xf bank_mask:0xf',
  f'v_add_f32_dpp {v(q)}, {v(q)}, {v(q)} row_ror:1 row_mask:0xf bank_mask:0xf',
  f'v_mov_b32 {v(q + 1)}, {v(q)}', f'v_permlane16_swap_b32 {v(q)}, {v(q + 1)}',
  f'v_mul_f32 {v(rec)}, {f32(1 / 512)}, {v(q)}', f'v_mul_f32 {v(q + 1)}, {f32(1 / 512)}, {v(q + 1)}',
  f'v_fma_f32 {v(q + 1)}, -{v(rec)}, {v(rec)}, {v(q + 1)}', f'v_max_f32 {v(q + 1)}, 0, {v(q + 1)}',
  f'v_add_f32 {v(q + 1)}, {f32(1e-5)}, {v(q + 1)}', f'v_rsq_f32 {v(rec + 1)}, {v(q + 1)}')
E(stamp('stats'))


def w2_dma(k):
    b = k % 4
    it = [f's_add_u32 m0, {s(sRB)}, {16384 * b}', f's_mov_b32 {s(sOW2)}, {32768 * k}']
    res = []
    for i in range(4):
        aft = [f'w2t_{k - 4}_7'] if (k >= 4 and i == 0) else []
        it.append(I(f'buffer_load_dwordx4 {v(vW2 + i)}, {s(rW2, 4)}, {s(sOW2)} offen offset:{1024 * i} lds', tok=f'w2d_{k}_{i}', after=aft))
        res.append(flat(it))
        it = []
    return res


def w2_tr(k):
    b = k % 4
    res = []
    for h in range(2):
        for t in range(4):
            n = h * 4 + t
            res.append([I(f'ds_read_b64_tr_b16 {a(16 * k + 4 * t + 2 * h, 2)}, {v(vB + t)} offset:{16384 * b + 2048 * h}',
                          tok=f'w2t_{k}_{n}', after=[f'w2d_{k}_{2 * h + 1}'])])
    return res


w2_stream = []
w2_stream += w2_dma(3)
for k in range(14):
    w2_stream += w2_tr(k)
    if k + 4 < 14:
        w2_stream += w2_dma(k + 4)
w2_pos = [0]


def w2_take(nk):
    n = int(round(nk * 12))
    r = w2_stream[w2_pos[0]:w2_pos[0] + n]
    w2_pos[0] += len(r)
    return r


LOOK = 3


def acc1(u, tt):
    return vACC + (u * 2 + tt) * 4


def w1_reads(n):
    st, p, u = n // 28, (n // 7) % 4, n % 7
    r = vRING + 4 * (n % 8)
    out = []
    aft = []
    if u == 0:
        out += [f's_add_u32 {s(sBLK)}, {s(sBP + p)}, {L_W1 + st * 28672}']
        out += [f'v_add_u32 {v(vA + i)}, {s(sBLK)}, {v(vAB + i)}' for i in range(3)]
        if p == 0:
            aft = [f'w1_{st}_6']
        if p == 1:
            out += [I('s_barrier', after={0: ['kbw'], 1: ['kbr1'], 3: ['xr_7_3']}.get(st, []))]
    for h in range(2):
        if u < 6:
            out.append(I(f'ds_read_b64_tr_b16 {v(r + 2 * h, 2)}, {v(vA + (u & 1))} offset:{2048 * (u >> 1) + 256 * h}', after=aft))
        else:
            out.append(I(f'ds_read_b64_tr_b16 {v(r + 2 * h, 2)}, {v(vA + 2)} offset:{6144 + 256 * h}', after=aft))
    return flat(out)


def g1_step(n):
    st, p, u = n // 28, (n // 7) % 4, n % 7
    first = (st == 0 and p == 0)
    r = vRING + 4 * (n % 8)
    out = []
    for tt in range(2):
        c = '0' if first else v(acc1(u, tt), 4)
        out.append(f'v_mfma_f32_16x16x32_bf16 {v(acc1(u, tt), 4)}, {v(r, 4)}, {v(xf(st, p, tt), 4)}, {c}')
    if p == 0:
        c = '0' if (st == 0 and u == 0) else a(aCS, 4)
        out.append(f'v_mfma_f32_16x16x32_bf16 {a(aCS, 4)}, {v(r, 4)}, {a(aSEL + 4 * u, 4)}, {c}')
    return flat(out)


kb = 208
hreg = 208
he = 220
xr = 240
str_ = 248
b1r = 228
preA = {0: x_dma(3), 1: x_dma(5), 2: x_dma(7), 3: []}
side = {}
side[0] = [[I(f'ds_read_b128 {v(kb, 4)}, {v(vKBR)}')], [I(f'ds_read_b128 {v(kb + 4, 4)}, {v(vKBR)} offset:1024', tok='kbr1')],
           [I(f'buffer_store_dwordx4 {v(kb, 4)}, {v(vKBS)}, {s(rWS, 4)}, 0 offen sc1', tok='kvst0')],
           [I(f'buffer_store_dwordx4 {v(kb + 4, 4)}, {v(vKBS + 1)}, {s(rWS, 4)}, 0 offen sc1', tok='kvst1')]]
side[0] += w1_dma(2)
side[0] += [poll_check('nonce', f'v_cmp_eq_u64 vcc, 0, {v(vN, 2)}', NONCE_LD) +
            flat([f'v_readfirstlane_b32 {s(sN)}, {v(vN)}', f'v_readfirstlane_b32 {s(sN + 1)}, {v(vN + 1)}',
                  f'v_mov_b32 {v(rec + 2)}, {v(vN)}', f'v_mov_b32 {v(rec + 3)}, {v(vN + 1)}',
                  f'buffer_store_dwordx4 {v(rec, 4)}, {v(vT + 11)}, {s(rWS, 4)}, {s(sOST)} offen sc1'])]
side[0] += x_dma(4)
side[1] = w1_dma(3) + [[I(f'buffer_store_dwordx2 {v(vN, 2)}, {v(vFL)}, {s(rWS, 4)}, {s(sFKV)} offen sc1', after=['kvst1'])]] + x_dma(6)
side[1] += [flat([f'v_subrev_u32 {v(vT)}, 4, {v(vHO)}', f'v_add_u32 {v(vT + 1)}, 1020, {v(vHO)}']),
            [I(f'buffer_load_dwordx4 {v(hreg, 4)}, {v(vHO)}, {s(rHS, 4)}, 0 offen')],
            [I(f'buffer_load_dwordx4 {v(hreg + 4, 4)}, {v(vHO)}, {s(rHS, 4)}, 0 offen offset:1024')],
            [I(f'buffer_load_dword {v(hreg + 8)}, {v(vT)}, {s(rHS, 4)}, 0 offen')],
            [I(f'buffer_load_dword {v(hreg + 9)}, {v(vT + 1)}, {s(rHS, 4)}, 0 offen')],
            [I(f'global_load_dwordx2 {v(b1r, 2)}, {v(vB1A)}, {s(pB1, 2)}')]]
side[2] = w2_dma(0) + w2_dma(1) + w2_dma(2) + [[I(POLL_LD)]]
hprep = []
for b in range(2):
    src = hreg + 4 * b
    hprep += [[I(f'v_alignbit_b32 {v(he + 4 * b)}, {v(src)}, {v(hreg + 8 + b)}, 16')]]
    hprep += [[I(f'v_alignbit_b32 {v(he + 4 * b + i)}, {v(src + i)}, {v(src + i - 1)}, 16')] for i in range(1, 4)]
hprep.append(flat([f's_lshr_b32 {s(sT)}, {s(sW)}, 1', f's_mul_i32 {s(sT)}, {s(sT)}, 8320', f's_add_u32 {s(sT)}, {s(sT)}, {L_HC + 32}',
                   f'v_add_u32 {v(vT)}, {s(sT)}, {v(vHO)}']))
hprep += [[I(f'ds_write_b128 {v(vT)}, {v(he, 4)}')], [I(f'ds_write_b128 {v(vT)}, {v(he + 4, 4)} offset:1024')],
          [I(f'ds_write_b128 {v(vT)}, {v(hreg, 4)} offset:4160')], [I(f'ds_write_b128 {v(vT)}, {v(hreg + 4, 4)} offset:{4160 + 1024}')]]
hprep += [flat([f'v_mov_b32 {v(vT + 10)}, 0', f'v_mov_b32 {v(vT + 11)}, 0',
                f's_lshr_b32 {s(sT)}, {s(sW)}, 1', f's_mul_i32 {s(sT)}, {s(sT)}, 4608', f's_add_u32 {s(sT)}, {s(sT)}, {L_XR}',
                f'v_add_u32 {v(vT + 1)}, {s(sT)}, {v(vL8)}', f'ds_write_b64 {v(vT + 1)}, {v(vT + 10, 2)} offset:4096',
                f'v_add_u32 {v(vT + 2)}, {s(sT)}, {v(vHO)}']),
          flat([f's_mul_i32 {s(sT)}, {s(sW)}, 4160', f's_add_u32 {s(sT)}, {s(sT)}, {L_HC}',
                f'v_and_b32 {v(vT + 1)}, 24, {v(vL8)}', f'v_add_u32 {v(vT + 1)}, {s(sT)}, {v(vT + 1)}', f'ds_write_b64 {v(vT + 1)}, {v(vT + 10, 2)}'])]
STAT_LD = [f'buffer_load_dwordx4 {v(str_ + 4 * tt, 4)}, {v(vSTA)}, {s(rWS, 4)}, {s(sOST)} offen offset:{256 * tt} sc1' for tt in range(2)]
b1f = 232
side[3] = ([poll_check('kv', POLL_CMP, POLL_LD)] +
           [[I(f'buffer_load_dwordx4 {v(xr, 4)}, {v(vHO)}, {s(rWS, 4)}, {s(sOKV)} offen sc1')],
            [I(f'buffer_load_dwordx4 {v(xr + 4, 4)}, {v(vHO)}, {s(rWS, 4)}, {s(sOKV)} offen offset:1024 sc1')],
            flat([f's_lshl2_add_u32 {s(sOST)}, {s(sTB)}, {s(sW)}', f's_lshl_b32 {s(sOST)}, {s(sOST)}, 9', f's_add_u32 {s(sOST)}, {s(sOST)}, {WS_STAT}',
                  STAT_LD[0]]), [I(STAT_LD[1])]] +
           w2_take(4 / 12) + hprep +
           [flat([f's_lshl_b32 {s(sT)}, {s(sW)}, 10', f's_add_u32 {s(sT)}, {s(sT)}, {L_CS}',
                  f'v_add_u32 {v(vT + 1)}, {s(sT)}, {v(vL16)}', f'ds_write_b128 {v(vT + 1)}, {a(aCS, 4)}']),
            flat([f'v_lshlrev_b32 {v(b1f)}, 16, {v(b1r)}', f'v_and_b32 {v(b1f + 1)}, 0xffff0000, {v(b1r)}']),
            flat([f'v_lshlrev_b32 {v(b1f + 2)}, 16, {v(b1r + 1)}', f'v_and_b32 {v(b1f + 3)}, 0xffff0000, {v(b1r + 1)}']),
            flat([f's_lshl_b32 {s(sT)}, {s(sW)}, 11', f's_add_u32 {s(sT)}, {s(sT)}, {L_CS + 4096}',
                  f'v_add_u32 {v(vG16)}, {s(sT)}, {v(vG16)}', f'v_lshl_add_u32 {v(vB1A)}, {v(vSTA)}, 2, {v(vG16)}']),
            flat([f'ds_write_b128 {v(vB1A)}, {v(b1f, 4)} offset:1024', f'v_add_u32 {v(vT + 1)}, {L_CS}, {v(vL16)}'])] +
           w2_take(1) +
           [[I(f'ds_write_b128 {v(vT + 2)}, {v(xr, 4)}')], [I(f'ds_write_b128 {v(vT + 2)}, {v(xr + 4, 4)} offset:1024')]])

E(x_read(0))
for n in range(LOOK):
    E(w1_reads(n))
for st in range(4):
    steps = []
    for n in range(28 * st, 28 * st + 28):
        k = n - 28 * st
        it = []
        if k == 24 and st < 3:
            it += x_read(2 * st + 2)
        if (k == 9 and st < 3) or (k == 1 and st == 3):
            it += x_read(2 * st + 1)
        if n + LOOK < 112:
            it += w1_reads(n + LOOK)
        it += g1_step(n)
        steps.append(it)
    head = interleave(steps[:5], preA[st], end=4)
    rest = interleave(steps[5:], side[st], start=(3 if st == 3 else 0), end=(22 if st == 3 else 19))
    E(head, rest)
    E(stamp(f'g1s{st}'))

vR, vRM = 240, 244
STAT_CMP = [f'v_cmp_ne_u64 vcc, {s(sN, 2)}, {v(str_ + 2, 2)}', f'v_cmp_ne_u64 {s(sM2, 2)}, {s(sN, 2)}, {v(str_ + 6, 2)}',
            f's_or_b64 vcc, vcc, {s(sM2, 2)}']
E(poll_check('stat', STAT_CMP, STAT_LD))
E('s_waitcnt lgkmcnt(0)', 's_barrier')
cx = 56
for w in range(4):
    E(f'ds_read_b128 {v(cx + 4 * w, 4)}, {v(vT + 1)} offset:{1024 * w}')
vCSr, vB1r = 144, 172
for u in range(7):
    E(f'ds_read_b128 {v(vB1r + 4 * u, 4)}, {v(vG16)} offset:{1024 + 64 * u}')
for tt in range(2):
    R, RM, m, r1 = vR + 2 * tt, vRM + 2 * tt, str_ + 4 * tt, str_ + 4 * tt + 1
    E(f'v_mul_f32 {v(R)}, {v(r1)}, {v(r1)}', f'v_mul_f32 {v(R)}, {f32(1e-5)}, {v(R)}', f'v_sub_f32 {v(R)}, {f32(1.0 + 1e-5)}, {v(R)}',
      f'v_rsq_f32 {v(R)}, {v(R)}', f'v_mul_f32 {v(R)}, {v(R)}, {v(r1)}', f'v_mul_f32_e64 {v(RM)}, -{v(R)}, {v(m)}')
E([f'v_pk_add_f32 {v(cx + i, 2)}, {v(cx + i, 2)}, {v(cx + 4 + i, 2)}' for i in (0, 2)],
  [f'v_pk_add_f32 {v(cx + 8 + i, 2)}, {v(cx + 8 + i, 2)}, {v(cx + 12 + i, 2)}' for i in (0, 2)],
  [f'v_pk_add_f32 {v(cx + i, 2)}, {v(cx + i, 2)}, {v(cx + 8 + i, 2)}' for i in (0, 2)],
  f'ds_write_b128 {v(vB1A)}, {v(cx, 4)}')
for u in range(7):
    E(f'ds_read_b128 {v(vCSr + 4 * u, 4)}, {v(vG16)} offset:{64 * u}')
E(stamp('b4'))

gt = 72
gel = []
po = [200, 204, 208, 212]
pi = 0


def gelu_pair(accr, csr, b1r_, R, RM, dst, tset):
    t = gt + 8 * tset
    return [
        f'v_pk_fma_f32 {v(t, 2)}, {v(csr, 2)}, {v(RM, 2)}, {v(b1r_, 2)} op_sel_hi:[1,0,1]',
        f'v_pk_fma_f32 {v(t, 2)}, {v(accr, 2)}, {v(R, 2)}, {v(t, 2)} op_sel_hi:[1,0,1]',
        f'v_pk_mul_f32 {v(t + 2, 2)}, {v(t, 2)}, {v(t, 2)}',
        f'v_pk_fma_f32 {v(t + 2, 2)}, {v(t + 2, 2)}, {s(sGK, 2)}, {s(sGK, 2)} op_sel:[0,1,0] op_sel_hi:[1,1,0]',
        f'v_pk_mul_f32 {v(t + 2, 2)}, {v(t + 2, 2)}, {v(t, 2)}',
        f'v_exp_f32 {v(t + 4)}, {v(t + 2)}', f'v_exp_f32 {v(t + 5)}, {v(t + 3)}',
        f'v_pk_add_f32 {v(t + 4, 2)}, {v(t + 4, 2)}, 1.0 op_sel_hi:[1,0]',
        f'v_rcp_f32 {v(t + 6)}, {v(t + 4)}', f'v_rcp_f32 {v(t + 7)}, {v(t + 5)}',
        f'v_pk_mul_f32 {v(t + 6, 2)}, {v(t + 6, 2)}, {v(t, 2)}',
        f'v_cvt_pk_bf16_f32 {v(dst)}, {v(t + 6)}, {v(t + 7)}']


def zip2(x, y):
    out = []
    for p_, q_ in zip(x, y):
        out += [p_, q_]
    return out


for tt in range(2):
    for p in range(4):
        dst = po[pi % 4]
        pi += 1
        us = [2 * p, 2 * p + 1] if p < 3 else [6]
        for k, u in enumerate(us):
            A = gelu_pair(acc1(u, tt), vCSr + 4 * u, vB1r + 4 * u, vR + 2 * tt, vRM + 2 * tt, dst + 2 * k, 0)
            B = gelu_pair(acc1(u, tt) + 2, vCSr + 4 * u + 2, vB1r + 4 * u + 2, vR + 2 * tt, vRM + 2 * tt, dst + 2 * k + 1, 1)
            gel += [[I(x)] for x in zip2(A, B)]
        if tt == 1 and p == 0:
            gel.append(flat([f's_add_u32 {s(sOH)}, {s(sOH)}, {16 * 3584}']))
        if p < 3:
            gel.append([I(f'buffer_store_dwordx4 {v(dst, 4)}, {v(vL16)}, {s(rWS, 4)}, {s(sOH)} offen offset:{1024 * p} sc1', tok=f'hst{tt}{p}')])
        else:
            gel.append([I(f'buffer_store_dwordx2 {v(dst, 2)}, {v(vL8)}, {s(rWS, 4)}, {s(sOH)} offen offset:3072 sc1', tok=f'hst{tt}{p}')])
E(interleave(gel, w2_take(4)))
E(stamp('gelu'))

cacc = 56
GF = [88, 152]
vH = [200, 88, 144, 200]


def conv_reads(cl):
    base = GF[cl & 1]
    out = []
    for i in range(8):
        g = base + 4 * i
        o = 16 * cl + 128 * (i & 1)
        out.append([I(f'ds_read2_b32 {v(g, 2)}, {v(vG + (i >> 1))} offset0:{o} offset1:{o + 1}')])
        out.append([I(f'ds_read2_b32 {v(g + 2, 2)}, {v(vG + (i >> 1))} offset0:{o + 2} offset1:{o + 3}')])
        out.append([I(f'ds_read_b128 {v(base + 32 + 4 * i, 4)}, {v(vF)} offset:{3584 - 512 * i + 64 * cl}')])
    return out


def conv_mfma(cl):
    base = GF[cl & 1]
    out = []
    seen = set()
    pairs = sorted([(x, y) for x in range(8) for y in range(8) if x + y <= 7], key=lambda t: (max(t), t[0] + t[1]))
    for (x, y) in pairs:
        d = v(cacc + 4 * (x + y), 4)
        c = d
        if cl == 0 and (x + y) not in seen:
            c = '0'
            seen.add(x + y)
        out.append([I(f'v_mfma_f32_16x16x32_bf16 {d}, {v(base + 4 * x, 4)}, {v(base + 32 + 4 * y, 4)}, {c}')])
    return out


def h_loads(o):
    out = []
    last_hi = [0]

    def hload(dst, w, vo, off):
        hi, lo = off // 3584 * 3584, off % 3584
        pre = []
        if hi != last_hi[0]:
            pre = [f's_add_u32 {s(sHL + o)}, {s(sHL + o)}, {hi - last_hi[0]}']
            last_hi[0] = hi
        return flat(pre + [f'buffer_load_dword{w} {dst}, {v(vo)}, {s(rWS, 4)}, {s(sHL + o)} offen offset:{lo} sc1'])
    for kap in range(14):
        aa, kk = kap // 7, kap % 7
        r = vH[o] + 4 * kap
        if kk == 3:
            for hf in range(2):
                out.append(hload(v(r + 2 * hf, 2), 'x2', vL8, (2 * aa + hf) * 3584 + 3072))
        else:
            fsl = 2 * aa + (1 if kk > 3 else 0)
            p = kk if kk < 3 else kk - 4
            out.append(hload(v(r, 4), 'x4', vL16, fsl * 3584 + p * 1024))
    return out


E(conv_reads(0))
hflag = [I(f'buffer_store_dwordx2 {v(vN, 2)}, {v(vFL)}, {s(rWS, 4)}, {s(sFH)} offen sc1', after=['hst13'])]
hpoll_addr = flat([f's_lshl1_add_u32 {s(sT)}, {s(sTB)}, {s(sTH)}', f's_lshl3_add_u32 {s(sT)}, {s(sT)}, {s(sW)}', f's_lshl_b32 {s(sT)}, {s(sT)}, 9',
                   f's_add_u32 {s(sT)}, {s(sT)}, {WS_FH}',
                   f'v_lshrrev_b32 {v(vT)}, 5, v0', f'v_lshl_add_u32 {v(vT)}, {v(vT)}, 11, {s(sT)}',
                   f'v_bfe_u32 {v(vT + 1)}, v0, 3, 2', f'v_lshl_add_u32 {v(vPA)}, {v(vT + 1)}, 7, {v(vT)}'])
eb, est = 232, 240
kx = 216
cx_addr = flat([f's_mul_i32 {s(sT)}, {s(sW)}, {8 * 1280}', f's_add_u32 {s(sT)}, {s(sT)}, {L_CX}',
                f'v_lshrrev_b32 {v(vT)}, 4, v0', f'v_lshl_add_u32 {v(vT)}, {v(vT)}, 6, {v(vL16)}',
                f'v_add_u32 {v(vT)}, {s(sT)}, {v(vT)}',
                f's_lshl_b32 {s(sT)}, {s(sW)}, 10', f's_sub_u32 {s(sT)}, {L_XR + 4088 - 512}, {s(sT)}',
                f'v_sub_u32 {v(vT + 1)}, {s(sT)}, {v(vL8)}'])
cx_addr2 = flat([f's_mul_i32 {s(sT)}, {s(sW)}, {2 * 1280}', f's_add_u32 {s(sT)}, {s(sT)}, {L_CX}',
                 f'v_and_b32 {v(vT + 2)}, 3, v0', f'v_mul_u32_u24 {v(vT + 2)}, 320, {v(vT + 2)}',
                 f'v_lshrrev_b32 {v(vT + 3)}, 2, v0', f'v_lshl_add_u32 {v(vT + 2)}, {v(vT + 3)}, 4, {v(vT + 2)}',
                 f'v_add_u32 {v(vT + 2)}, {s(sT)}, {v(vT + 2)}'])
kx_reads = [[I(f'ds_read_b64 {v(kx + 4 * i + 2 * ch, 2)}, {v(vT + 1)} offset:{512 * (1 - i) + 4608 * ch}')] for i in range(2) for ch in range(2)]
for cl in range(4):
    sd = conv_reads(cl + 1) if cl < 3 else []
    m = interleave(conv_mfma(cl), sd, end=30)
    extra = []
    if cl == 0:
        extra = w2_take(2)
    if cl == 1:
        extra = w2_take(0.5) + [hflag] + w2_take(1.5) + [hpoll_addr]
    if cl == 2:
        extra = w2_take(2)
    if cl == 3:
        extra = w2_take(100) + [cx_addr] + kx_reads + [cx_addr2] + [[I(POLL_LD)]]
    E(interleave(m, extra))
E(stamp('conv'))

for cb_ in range(8):
    E(f'ds_write_b128 {v(vT)}, {v(cacc + 4 * cb_, 4)} offset:{1280 * cb_}')
E('s_waitcnt lgkmcnt(0)', 's_barrier')
cr = 88
for i in range(2):
    for sw in range(4):
        E(f'ds_read_b128 {v(cr + 16 * i + 4 * sw, 4)}, {v(vT + 2)} offset:{sw * 8 * 1280 + i * 1280}')
ku = 120
for i in range(2):
    for ch in range(2):
        k = kx + 4 * i + 2 * ch
        u = ku + 8 * i + 4 * ch
        E(f'v_and_b32 {v(u)}, 0xffff0000, {v(k + 1)}', f'v_lshlrev_b32 {v(u + 1)}, 16, {v(k + 1)}',
          f'v_and_b32 {v(u + 2)}, 0xffff0000, {v(k)}', f'v_lshlrev_b32 {v(u + 3)}, 16, {v(k)}')
E(stamp('cx'))
E(poll_check('h', POLL_CMP, POLL_LD))
E(stamp('hpoll'))
yo = 136
cep = []
for i in range(2):
    for ch in range(2):
        A, B = cr + 16 * i + 8 * ch, cr + 16 * i + 8 * ch + 4
        u = ku + 8 * i + 4 * ch
        cep += [[x] for x in flat([f'v_pk_add_f32 {v(A, 2)}, {v(A, 2)}, {v(B, 2)}', f'v_pk_add_f32 {v(A + 2, 2)}, {v(A + 2, 2)}, {v(B + 2, 2)}',
                                   [f'v_fmac_f32 {v(A + e)}, {s(sD + ch)}, {v(u + e)}' for e in range(4)],
                                   f'v_cvt_pk_bf16_f32 {v(yo + 4 * i + 2 * ch)}, {v(A)}, {v(A + 1)}',
                                   f'v_cvt_pk_bf16_f32 {v(yo + 4 * i + 2 * ch + 1)}, {v(A + 2)}, {v(A + 3)}'])]
    cep.append([I(f'buffer_store_dwordx4 {v(yo + 4 * i, 4)}, {v(vL16)}, {s(rWS, 4)}, {s(sOY)} offen offset:{1024 * i} sc1', tok=f'yst{i}')])
H0 = h_loads(0)
E(H0[:4])
E(interleave(cep, H0[4:]))
E(stamp('cepi'))

g2acc = [56, 72]


def g2_mfma(o):
    out = []
    acc = g2acc[o & 1]
    for kap in range(14):
        for t in range(4):
            d = v(acc + 4 * t, 4)
            c = '0' if kap == 0 else d
            out.append([I(f'v_mfma_f32_16x16x32_bf16 {d}, {a(16 * kap + 4 * t, 4)}, {v(vH[o] + 4 * kap, 4)}, {c}')])
    return out


def g2_write(o):
    acc = g2acc[o & 1]
    pre = flat([f's_add_u32 {s(sT)}, {s(sW)}, {1 + o}', f's_and_b32 {s(sT)}, {s(sT)}, 3', f's_mul_i32 {s(sT)}, {s(sT)}, 12288',
                f's_add_u32 {s(sT)}, {s(sT)}, {L_GX + 4096 * o}', f'v_add_u32 {v(vT)}, {s(sT)}, {v(vL16)}'])
    return [pre] + [[I(f'ds_write_b128 {v(vT)}, {v(acc + 4 * t, 4)} offset:{1024 * t}')] for t in range(4)]


eb = 4
est = 12
ex = 16
yt = 24
yflag = [I(f'buffer_store_dwordx2 {v(vN, 2)}, {v(vFL)}, {s(rWS, 4)}, {s(sFY)} offen sc1', after=['yst1'])]
ep_loads = [flat([f's_lshl_b32 {s(sT)}, {s(sW)}, 11', f's_add_u32 m0, {s(sT)}, {L_EP}', f's_lshl_b32 {s(sT2)}, {s(sCB)}, 7',
                  I(f'buffer_load_dwordx4 {v(vEPA)}, {s(rX, 4)}, 0 offen lds')]),
            [I(f'buffer_load_dwordx4 {v(vEPA + 1)}, {s(rX, 4)}, 0 offen offset:1024 lds', tok='epx')],
            flat([f'v_lshrrev_b32 {v(vT + 5)}, 4, v0', f'v_lshl_add_u32 {v(vT + 5)}, {v(vT + 5)}, 3, {s(sT2)}',
                  f's_lshl_b32 {s(sT)}, {s(sTILE)}, 8', f's_add_u32 {s(sT)}, {s(sT)}, {WS_STAT}',
                  f'buffer_load_dwordx4 {v(est, 4)}, {v(vSTA)}, {s(rWS, 4)}, {s(sT)} offen sc1'])]
ep_loads += [[I(f'global_load_dwordx2 {v(eb + 2 * t, 2)}, {v(vT + 5)}, {s(pB2, 2)} offset:{32 * t}')] for t in range(4)]
ypoll_addr = flat([f's_lshl_b32 {s(sT)}, {s(sCB)}, 14', f's_lshr_b32 {s(sCNT)}, {s(sTB)}, 2', f's_lshl_b32 {s(sCNT)}, {s(sCNT)}, 7',
                   f's_add_u32 {s(sT)}, {s(sT)}, {s(sCNT)}', f's_add_u32 {s(sT)}, {s(sT)}, {WS_FY}',
                   f'v_lshrrev_b32 {v(vPA)}, 1, v0', f'v_lshl_add_u32 {v(vPA)}, {v(vPA)}, 9, {s(sT)}'])
yl_addr = flat([f's_lshl_b32 {s(sT)}, {s(sTILE)}, 6',
                f's_lshl_b32 {s(sCNT)}, {s(sCB)}, 18', f's_add_u32 {s(sT)}, {s(sT)}, {s(sCNT)}', f's_add_u32 {s(sOY)}, {s(sT)}, {WS_Y}',
                f's_add_u32 {s(sOKV)}, {s(sOY)}, {16 * 8192}',
                f'v_lshrrev_b32 {v(vT + 1)}, 2, v0', f'v_lshlrev_b32 {v(vT + 1)}, 13, {v(vT + 1)}',
                f'v_and_b32 {v(vT + 2)}, 3, v0', f'v_lshl_add_u32 {v(vT + 1)}, {v(vT + 2)}, 4, {v(vT + 1)}'])
vED = 32
EDr = [32, 33, 34, 3]
ed_addr = flat([f's_lshl_b32 {s(sT)}, {s(sW)}, 11', f's_add_u32 {s(sT)}, {s(sT)}, {L_EP}',
                f'v_bfe_u32 {v(vT + 2)}, v0, 1, 3', f'v_lshrrev_b32 {v(vT + 3)}, 5, v0', f'v_xor_b32 {v(vT + 2)}, {v(vT + 2)}, {v(vT + 3)}',
                f'v_lshlrev_b32 {v(vT + 2)}, 4, {v(vT + 2)}', f'v_lshl_add_u32 {v(vT + 2)}, {v(vSTA)}, 3, {v(vT + 2)}',
                f'v_bfe_u32 {v(vT + 3)}, v0, 4, 1', f'v_lshl_add_u32 {v(vT + 2)}, {v(vT + 3)}, 3, {v(vT + 2)}',
                f'v_add_u32 {v(EDr[0])}, {s(sT)}, {v(vT + 2)}',
                [f'v_xor_b32 {v(EDr[t])}, {32 * t}, {v(EDr[0])}' for t in range(1, 4)],
                f'v_add_u32 {v(vT + 9)}, {s(sT)}, {v(vL16)}'])
sm = 96
xn = 112
tu = 128
ep_pre = [[I(f'ds_read_b64 {v(ex + 2 * t, 2)}, {v(EDr[t])}', after=['epx'])] for t in range(4)]
for t in range(4):
    for e in range(4):
        rx, rb = ex + 2 * t + (e >> 1), eb + 2 * t + (e >> 1)
        un = (lambda d, r: f'v_and_b32 {v(d)}, 0xffff0000, {v(r)}') if e & 1 else (lambda d, r: f'v_lshlrev_b32 {v(d)}, 16, {v(r)}')
        o_, n_ = sm + 4 * t + e, xn + 4 * t + e
        for x in [un(n_, rx), un(o_, rb), f'v_add_f32 {v(o_)}, {v(o_)}, {v(n_)}', f'v_sub_f32 {v(n_)}, {v(n_)}, {v(est)}',
                  f'v_mul_f32 {v(n_)}, {v(n_)}, {v(est + 1)}']:
            ep_pre.append([I(x)])

H1, H2, H3 = h_loads(1), h_loads(2), h_loads(3)
E(interleave(g2_mfma(0), H1 + H2[:8] + [yflag] + ep_loads))
E(stamp('g2t0'))
E(interleave(g2_mfma(1), H2[8:] + g2_write(0) + H3 + [ypoll_addr, ed_addr] + [[I(POLL_LD)]], start=1))
E(stamp('g2t1'))
yr = 88
E(interleave(g2_mfma(2), g2_write(1) + [yl_addr] + ep_pre[:40] + [poll_check('y', POLL_CMP, POLL_LD)] +
             [[I(f'buffer_load_dwordx4 {v(yr, 4)}, {v(vT + 1)}, {s(rWS, 4)}, {s(sOY)} offen sc1')],
              [I(f'buffer_load_dwordx4 {v(yr + 4, 4)}, {v(vT + 1)}, {s(rWS, 4)}, {s(sOKV)} offen sc1')]] + ep_pre[40:], start=3))
E(stamp('g2t2'))
M3 = g2_mfma(3)
E(interleave(M3[:8], g2_write(2), start=2))
E('s_waitcnt lgkmcnt(0)', 's_barrier')
pr = 144
sd = [flat([f's_mul_i32 {s(sT)}, {s(sW)}, 12288', f's_add_u32 {s(sT)}, {s(sT)}, {L_GX}', f'v_add_u32 {v(vT)}, {s(sT)}, {v(vL16)}'])]
for i in range(12):
    sd.append([I(f'ds_read_b128 {v(pr + 4 * i, 4)}, {v(vT)} offset:{1024 * i}')])
sd.append(flat([f'v_add_u32 {v(vT + 2)}, {s(sRB)}, {v(vL16)}',
                f'ds_write_b128 {v(vT + 2)}, {v(yr, 4)}', f'ds_write_b128 {v(vT + 2)}, {v(yr + 4, 4)} offset:1024']))
sd.append(flat([f'v_lshrrev_b32 {v(vT + 3)}, 3, v0', f'v_lshlrev_b32 {v(vT + 3)}, 6, {v(vT + 3)}',
                f'v_and_b32 {v(vT + 2)}, 3, v0', f'v_lshl_add_u32 {v(vT + 3)}, {v(vT + 2)}, 4, {v(vT + 3)}',
                f'v_bfe_u32 {v(vT + 2)}, v0, 2, 1', f'v_lshl_add_u32 {v(vT + 3)}, {v(vT + 2)}, 3, {v(vT + 3)}',
                f'v_add_u32 {v(vT + 3)}, {s(sRB)}, {v(vT + 3)}']))
for t in range(4):
    sd.append([I(f'ds_read_b64_tr_b16 {v(yt + 2 * t, 2)}, {v(vT + 3)} offset:{512 * t}')])
for j in range(3):
    for i in range(16):
        sd.append([I(f'v_add_f32 {v(sm + i)}, {v(sm + i)}, {v(pr + 16 * j + i)}')])
for t in range(4):
    for e in range(4):
        ry = yt + 2 * t + (e >> 1)
        un = (lambda d, r: f'v_and_b32 {v(d)}, 0xffff0000, {v(r)}') if e & 1 else (lambda d, r: f'v_lshlrev_b32 {v(d)}, 16, {v(r)}')
        b = tu + (e & 1)
        sd.append([I(un(b, ry))])
        sd.append([I(f'v_fmac_f32 {v(sm + 4 * t + e)}, {v(xn + 4 * t + e)}, {v(b)}')])
E(interleave(M3[8:], sd))
E(stamp('g2t3'))
acc = g2acc[1]
for t in range(4):
    E(f'v_pk_add_f32 {v(sm + 4 * t, 2)}, {v(sm + 4 * t, 2)}, {v(acc + 4 * t, 2)}',
      f'v_pk_add_f32 {v(sm + 4 * t + 2, 2)}, {v(sm + 4 * t + 2, 2)}, {v(acc + 4 * t + 2, 2)}',
      f'v_cvt_pk_bf16_f32 {v(yt + 2 * t)}, {v(sm + 4 * t)}, {v(sm + 4 * t + 1)}',
      f'v_cvt_pk_bf16_f32 {v(yt + 2 * t + 1)}, {v(sm + 4 * t + 2)}, {v(sm + 4 * t + 3)}',
      f'ds_write_b64 {v(EDr[t])}, {v(yt + 2 * t, 2)}')
E(f'ds_read_b128 {v(pr, 4)}, {v(vT + 9)}', f'ds_read_b128 {v(pr + 4, 4)}, {v(vT + 9)} offset:1024',
  f'buffer_store_dwordx4 {v(pr, 4)}, {v(vEPA)}, {s(rOUT, 4)}, 0 offen',
  f'buffer_store_dwordx4 {v(pr + 4, 4)}, {v(vEPA + 1)}, {s(rOUT, 4)}, 0 offen offset:1024')
if STAMPS:
    E(stamp('st'))
    E('s_waitcnt vmcnt(0)')
    E(stamp('end'))
    E(f's_memrealtime {s(sST, 2)}', 's_waitcnt lgkmcnt(0)', f'v_writelane_b32 {v(vSTMP)}, {s(sST)}, 63',
      f's_lshl2_add_u32 {s(sT)}, s2, {s(sW)}', f's_lshl_b32 {s(sT)}, {s(sT)}, 8', f's_add_u32 {s(sT)}, {s(sT)}, {WS_STAMP}',
      f'v_lshlrev_b32 {v(vT)}, 2, v0',
      f'buffer_store_dword {v(vSTMP)}, {v(vT)}, {s(rWS, 4)}, {s(sT)} offen')
if '--dbgspan' in sys.argv:
    E(f'v_readlane_b32 {s(sT)}, {v(vSTMP)}, 62', f's_not_b32 {s(sT)}, {s(sT)}', f'v_mov_b32 {v(60)}, {s(sST)}', f'v_mov_b32 {v(61)}, {s(sT)}',
      f'v_mov_b32 {v(62)}, 8', f'v_mov_b32 {v(63)}, 12', 's_mov_b64 exec, 1',
      f'global_atomic_umax {v(62)}, {v(60)}, {s(pDBG, 2)} sc1', f'global_atomic_umax {v(63)}, {v(61)}, {s(pDBG, 2)} sc1',
      's_mov_b64 exec, -1',
      f's_lshl2_add_u32 {s(sT)}, s2, {s(sW)}', f's_cmp_lg_u32 {s(sT)}, 20', 's_cbranch_scc1 Lend',
      's_mov_b64 exec, 0x82793',
      f'v_mbcnt_lo_u32_b32 {v(62)}, exec_lo, 0', f'v_lshlrev_b32 {v(62)}, 2, {v(62)}',
      f'global_store_dword {v(62)}, {v(vSTMP)}, {s(pDBG, 2)} offset:16')
E('Lend:', 's_endpgm')

assert w2_pos[0] == len(w2_stream)
main = insert_nops(merge_waits(insert_waits(prog)))
tl = insert_nops(tail)

HEADER = open('cdna_kernels/%s.s.ref' % NAME).read().split('; Override launch')[0]
out = HEADER
out += f'; @launch grid=(256,1,1) block=(256,1,1) lds={LDS_BYTES}\n'
if STAMPS:
    out += '; STAMPS ' + ' '.join(stamp_names) + '\n'
out += f'''.amdgcn_target "amdgcn-amd-amdhsa--gfx950"
.text
.globl {NAME}_kernel
.p2align 8
.type {NAME}_kernel,@function
{NAME}_kernel:
'''
out += emit(main) + '\n' + emit(tl) + '\nLcode_end:\n    s_endpgm\n'
out += f'''.section .rodata,"a"
.p2align 6
.amdhsa_kernel {NAME}_kernel
  .amdhsa_next_free_vgpr 512
  .amdhsa_next_free_sgpr 102
  .amdhsa_accum_offset 256
  .amdhsa_group_segment_fixed_size 0
  .amdhsa_kernarg_size 112
  .amdhsa_user_sgpr_count 2
  .amdhsa_user_sgpr_kernarg_segment_ptr 1
  .amdhsa_system_sgpr_workgroup_id_x 1
.end_amdhsa_kernel
'''
dst = [x for x in sys.argv[1:] if not x.startswith('--')]
path = dst[0] if dst else f'cdna_kernels/{NAME}.s'
open(path, 'w').write(out)
from collections import Counter
c = Counter(i.kind for i in main)
print(path, dict(c), 'nop states', sum(int(i.text.split()[1]) + 1 for i in main if i.kind == 'nop'))
```

```python
import re

REG_RE = re.compile(r'^(-?)(?:abs\()?([vas])(?:(\d+)|\[(\d+):(\d+)\])\)?$')


def regs_of(tok):
    tok = tok.strip()
    if tok in ('vcc', 'exec', 'm0', 'scc'):
        return [tok]
    if tok in ('vcc_lo', 'vcc_hi'):
        return ['vcc']
    if tok in ('exec_lo', 'exec_hi'):
        return ['exec']
    m = REG_RE.match(tok)
    if not m:
        return []
    f = m.group(2)
    if m.group(3) is not None:
        return [(f, int(m.group(3)))]
    return [(f, i) for i in range(int(m.group(4)), int(m.group(5)) + 1)]


def split_ops(s):
    out, depth, cur = [], 0, ''
    for ch in s:
        if ch in '[(':
            depth += 1
        if ch in '])':
            depth -= 1
        if ch == ',' and depth == 0:
            out.append(cur.strip())
            cur = ''
        else:
            cur += ch
    if cur.strip():
        out.append(cur.strip())
    return out


TRANS = ('v_exp_f32', 'v_log_f32', 'v_rcp_f32', 'v_rsq_f32', 'v_sqrt_f32', 'v_sin_f32', 'v_cos_f32')


class I:
    __slots__ = ('text', 'mn', 'kind', 'rd', 'wr', 'tok', 'after', 'srcc', 'srcab', 'cmt', 'wide_st', 'sdata')

    def __init__(self, text, tok=None, after=(), cmt=None):
        self.text = text.strip()
        self.tok = tok
        self.after = tuple(after) if not isinstance(after, str) else (after,)
        self.cmt = cmt
        self.srcc = []
        self.srcab = []
        self.wide_st = False
        self.sdata = []
        parts = self.text.split(None, 1)
        mn = parts[0]
        self.mn = mn
        rest = parts[1] if len(parts) > 1 else ''
        ops = split_ops(rest)
        clean = []
        mods = []
        for o in ops:
            w = o.split()
            clean.append(w[0] if w else '')
            mods += w[1:]
        ops = clean
        R = lambda idx: [r for i in idx if i < len(ops) for r in regs_of(ops[i])]
        n = len(ops)
        rd, wr = [], []
        if mn.endswith(':'):
            self.kind = 'label'
        elif mn.startswith('.'):
            self.kind = 'dir'
        elif mn.startswith('v_mfma'):
            self.kind = 'mfma'
            wr = R([0])
            self.srcab = R([1, 2])
            self.srcc = R([3])
            rd = self.srcab + self.srcc + ['exec']
        elif mn.startswith('v_'):
            self.kind = 'trans' if mn.replace('_e32', '').replace('_e64', '') in TRANS else 'valu'
            base = mn.replace('_e32', '').replace('_e64', '').replace('_dpp', '').replace('_sdwa', '')
            if base.startswith('v_cmp'):
                wr = R([0])
                rd = R(range(1, n))
            elif base in ('v_readfirstlane_b32', 'v_readlane_b32'):
                wr = R([0])
                rd = R(range(1, n))
            elif base in ('v_swap_b32', 'v_permlane16_swap_b32', 'v_permlane32_swap_b32'):
                wr = R([0, 1])
                rd = R([0, 1])
            elif base in ('v_add_co_u32', 'v_sub_co_u32', 'v_addc_co_u32', 'v_subb_co_u32'):
                wr = R([0, 1])
                rd = R(range(2, n))
            elif base in ('v_fmac_f32', 'v_dot2c_f32_bf16', 'v_writelane_b32', 'v_pk_fmac_f16'):
                wr = R([0])
                rd = R(range(0, n))
            else:
                wr = R([0])
                rd = R(range(1, n))
                if '_dpp' in mn or '_sdwa' in mn:
                    rd += R([0])
            rd = rd + ['exec']
        elif mn.startswith('ds_'):
            if mn.startswith('ds_read') or mn.startswith('ds_bpermute') or mn.startswith('ds_swizzle'):
                self.kind = 'ds_rd'
                wr = R([0])
                rd = R(range(1, n))
            else:
                self.kind = 'ds_wr'
                rd = R(range(0, n))
            rd += ['exec']
        elif mn.startswith('buffer_load') or mn.startswith('global_load'):
            if 'lds' in mods:
                self.kind = 'vm_dma'
                rd = R(range(0, n)) + ['m0']
            else:
                self.kind = 'vm_ld'
                wr = R([0])
                rd = R(range(1, n))
            rd += ['exec']
        elif mn.startswith('buffer_store') or mn.startswith('global_store') or mn.startswith('buffer_atomic') or mn.startswith('global_atomic'):
            self.kind = 'vm_st'
            rd = R(range(0, n)) + ['exec']
            if mn.endswith('x4') or mn.endswith('x3'):
                self.wide_st = True
                self.sdata = R([0]) if mn.startswith('buffer') else R([1])
        elif mn.startswith('s_load') or mn in ('s_memtime', 's_memrealtime'):
            self.kind = 'smem'
            wr = R([0])
            rd = R(range(1, n))
        elif mn == 's_waitcnt':
            self.kind = 'wait'
        elif mn == 's_barrier':
            self.kind = 'barrier'
        elif mn == 's_nop':
            self.kind = 'nop'
        elif mn.startswith('s_cbranch') or mn in ('s_branch', 's_endpgm'):
            self.kind = 'branch'
            if 'vcc' in mn:
                rd = ['vcc']
            if 'scc' in mn:
                rd = ['scc']
            if 'exec' in mn:
                rd = ['exec']
        elif mn in ('s_sleep', 's_setprio'):
            self.kind = 'salu'
        elif mn.startswith('s_cmp') or mn.startswith('s_bitcmp'):
            self.kind = 'salu'
            rd = R(range(0, n))
            wr = ['scc']
        elif mn.startswith('s_'):
            self.kind = 'salu'
            wr = R([0]) + ['scc']
            rd = R(range(1, n))
            if 'saveexec' in mn:
                wr += ['exec']
                rd += ['exec']
            if mn.startswith('s_cselect') or mn.startswith('s_addc') or mn.startswith('s_subb'):
                rd += ['scc']
            if mn in ('s_addk_i32', 's_mulk_i32'):
                rd += R([0])
        else:
            raise ValueError('unknown instr ' + text)
        self.rd = set(rd)
        self.wr = set(wr)

    def __repr__(self):
        return self.text


def is_valu(i):
    return i.kind in ('valu', 'trans')


def insert_waits(prog):
    out = []
    vm = []
    lg = []
    done_tok = set()

    def need(lst, ins):
        k = -1
        touch = ins.rd | ins.wr
        for idx, o in enumerate(lst):
            if ((o.wr & touch) and not (ins.kind == 'vm_ld' and o.kind == 'vm_ld' and not (o.wr & ins.rd))) or (o.tok is not None and o.tok in ins.after):
                k = idx
        return k

    all_toks = set(i.tok for i in prog if i.tok is not None)
    seen = set()
    for ins in prog:
        for t in ins.after:
            assert t in all_toks, f'unknown token {t} for {ins.text}'
            assert t in seen, f'token {t} not yet issued for {ins.text}'
        if ins.kind == 'wait':
            m = re.search(r'vmcnt\((\d+)\)', ins.text)
            if m:
                n = int(m.group(1))
                vm = vm[len(vm) - n:] if n < len(vm) else vm
                if n == 0:
                    vm = []
            m = re.search(r'lgkmcnt\((\d+)\)', ins.text)
            if m:
                n = int(m.group(1))
                if n == 0:
                    lg = []
                elif not any(o.kind == 'smem' for o in lg):
                    lg = lg[len(lg) - n:] if n < len(lg) else lg
            out.append(ins)
            continue
        if ins.kind in ('label', 'dir'):
            out.append(ins)
            continue
        kv = need(vm, ins)
        kl = need(lg, ins)
        parts = []
        if kv >= 0:
            n = min(len(vm) - 1 - kv, 63)
            parts.append(f'vmcnt({n})')
            vm = vm[len(vm) - n:] if n > 0 else []
        if kl >= 0:
            if any(o.kind == 'smem' for o in lg):
                n = 0
            else:
                n = min(len(lg) - 1 - kl, 15)
            parts.append(f'lgkmcnt({n})')
            lg = lg[len(lg) - n:] if n > 0 else []
        if parts:
            out.append(I('s_waitcnt ' + ' '.join(parts)))
        if ins.mn != 's_nop' or not ins.after:
            out.append(ins)
        if ins.tok is not None:
            seen.add(ins.tok)
        if ins.kind in ('vm_ld', 'vm_dma', 'vm_st'):
            vm.append(ins)
            assert len(vm) <= 63, 'vmcnt overflow near ' + ins.text
        if ins.kind in ('ds_rd', 'ds_wr', 'smem'):
            lg.append(ins)
    return out


def merge_waits(prog):
    out = []
    for ins in prog:
        if ins.kind == 'wait' and out and out[-1].kind == 'wait':
            a, b = out[-1].text, ins.text
            d = {}
            for t in (a, b):
                for k, v in re.findall(r'(vmcnt|lgkmcnt)\((\d+)\)', t):
                    d[k] = min(d.get(k, 99), int(v))
            out[-1] = I('s_waitcnt ' + ' '.join(f'{k}({v})' for k, v in d.items()))
        else:
            out.append(ins)
    return out


def is_sgpr(r):
    return r == 'vcc' or (isinstance(r, tuple) and r[0] == 's')


def is_vgpr(r):
    return isinstance(r, tuple) and r[0] in 'va'


def mfma_passes(i):
    return 8 if '32x32' in i.mn else 4


def required_gap(p, c):
    g = 0
    pv = is_valu(p)
    cv = is_valu(c)
    if pv:
        vw = {r for r in p.wr if is_vgpr(r)}
        sw = {r for r in p.wr if is_sgpr(r)}
        if c.kind == 'mfma' and vw & c.rd:
            g = max(g, 2)
        if cv:
            if p.kind == 'trans' and c.kind != 'trans' and vw & (c.rd | c.wr):
                g = max(g, 1)
            if p.kind == 'trans' and c.kind == 'trans' and vw & c.rd:
                g = max(g, 1)
            if sw & c.rd:
                g = max(g, 4 if ('readlane' in c.mn or 'writelane' in c.mn) else 2)
            if ('readlane' in c.mn or 'readfirstlane' in c.mn) and vw & c.rd:
                g = max(g, 1)
            if ('permlane' in c.mn or '_dpp' in c.mn) and vw & c.rd:
                g = max(g, 2)
            if ('_sdwa' in p.mn or 'op_sel' in p.text and not p.mn.startswith('v_pk')) and vw & (c.rd | c.wr):
                g = max(g, 1)
            if 'dot2' in p.mn and vw & (c.rd | c.wr) and not (c.mn == p.mn):
                g = max(g, 3)
            if 'dot2' in p.mn and c.mn == p.mn and vw & c.rd:
                ops = split_ops(c.text.split(None, 1)[1])
                ab = set(regs_of(ops[1]) + regs_of(ops[2].split()[0]))
                if vw & ab:
                    g = max(g, 3)
        if p.kind == 'trans' and c.kind in ('ds_wr', 'vm_st', 'mfma') and vw & c.rd:
            g = max(g, 2)
        if 'dot2' in p.mn and c.kind in ('ds_wr', 'vm_st', 'mfma', 'ds_rd', 'vm_ld') and vw & (c.rd | c.wr):
            g = max(g, 3)
        if c.kind in ('vm_ld', 'vm_dma', 'vm_st') and sw & c.rd:
            g = max(g, 5)
        if c.kind == 'salu' and sw & c.rd:
            g = max(g, 1)
        if c.kind == 'branch' and 'vcc' in sw and 'vcc' in c.rd:
            g = max(g, 5)
    if p.kind == 'salu':
        if 'm0' in p.wr and c.kind == 'vm_dma':
            g = max(g, 1)
        if 'exec' in p.wr and ('_dpp' in c.mn or 'permlane' in c.mn or c.kind == 'mfma'):
            g = max(g, 4)
    if p.kind == 'mfma':
        ps = mfma_passes(p)
        big = {4: 8, 8: 12}[ps]
        ovl = {4: 6, 8: 10}[ps]
        war = {4: 3, 8: 7}[ps]
        if c.kind == 'mfma':
            if p.wr & set(c.srcab):
                g = max(g, big)
            if p.wr & set(c.srcc):
                if not (set(c.srcc) == p.wr and mfma_passes(c) == ps):
                    g = max(g, ovl)
            elif p.wr & c.wr:
                g = max(g, ovl)
        elif cv:
            if p.wr & (c.rd | c.wr):
                g = max(g, big)
            if set(p.srcc) & c.wr:
                g = max(g, war)
        elif c.kind in ('ds_rd', 'ds_wr', 'vm_ld', 'vm_st', 'vm_dma'):
            if p.wr & (c.rd | c.wr):
                g = max(g, big)
    if p.wide_st and set(p.sdata) & c.wr:
        g = max(g, 2)
    return g


def states(i):
    if i.kind in ('label', 'dir'):
        return 0
    if i.kind == 'nop':
        return int(i.text.split()[1], 0) + 1
    return 1


def insert_nops(prog):
    out = []
    for ins in prog:
        if ins.kind not in ('label', 'dir', 'nop', 'wait'):
            dist = 0
            need = 0
            for p in reversed(out):
                if dist >= 20:
                    break
                g = required_gap(p, ins) if p.kind not in ('label', 'dir', 'nop', 'wait') else 0
                if g - dist > need:
                    need = g - dist
                dist += states(p)
            while need > 0:
                k = min(need, 16)
                out.append(I(f's_nop {k - 1}'))
                need -= k
        out.append(ins)
    return out


def interleave(main, side, start=0, end=None):
    main = list(main)
    if end is None:
        end = len(main)
    n = end - start
    res = list(main[:start])
    k = 0
    ns = len(side)
    for idx in range(n):
        res.append(main[start + idx])
        tgt = ((idx + 1) * ns + n - 1) // n if n else ns
        tgt = min(ns, (idx + 1) * ns // n)
        while k < tgt:
            res.append(side[k])
            k += 1
    while k < ns:
        res.append(side[k])
        k += 1
    res += main[end:]
    return res


def flat(x):
    out = []
    for e in x:
        if isinstance(e, (list, tuple)):
            out += flat(e)
        elif isinstance(e, str):
            out.append(I(e))
        else:
            out.append(e)
    return out


def emit(prog):
    lines = []
    for i in prog:
        if i.kind == 'label':
            lines.append(i.text)
        else:
            t = '    ' + i.text
            if i.cmt:
                t = t.ljust(84) + '; ' + i.cmt
            lines.append(t)
    return '\n'.join(lines)


def cost(i, prev=None):
    if i.kind in ('label', 'dir'):
        return 0
    if i.kind == 'nop':
        return 4 * states(i)
    pen = 8 if (prev is not None and is_valu(prev)) else 0
    if i.kind in ('vm_ld', 'vm_dma', 'vm_st'):
        return 8 + pen
    if i.kind == 'ds_rd':
        return 5 + pen
    if i.kind == 'ds_wr':
        return 16 + pen
    if i.kind == 'trans':
        return 8
    return 4


def ucost(u, prev):
    c = 0
    for o in u:
        c += cost(o, prev)
        prev = o
    return c


def schedule_mfma(prog):
    O = []
    M = []
    lastfence = 0
    orig_pos = []
    for ins in prog:
        if ins.kind == 'mfma':
            lo = lastfence
            touch_r = ins.rd
            for k in range(len(O) - 1, lo - 1, -1):
                if any((o.wr & (ins.rd | ins.wr)) or (o.rd & ins.wr) for o in O[k]):
                    lo = k + 1
                    break
            M.append((ins, lo))
            orig_pos.append(len(O))
        else:
            if ins.kind == 'label' and O and O[-1][-1].kind == 'branch':
                O[-1].append(ins)
            else:
                O.append([ins])
            if ins.kind in ('wait', 'smem') or ins.mn == 's_setprio' or (ins.kind == 'label' and not ins.text.startswith('Lback')) or \
                    (ins.kind == 'branch' and 'Lslow' not in ins.text):
                lastfence = len(O)
    need = [0] * len(O)
    mi = 0
    for k, u in enumerate(O):
        while mi < len(M) and orig_pos[mi] <= k:
            mi += 1
        n = 0
        fence = any(o.kind == 'smem' or o.mn == 's_setprio' or (o.kind == 'branch' and 'Lslow' not in o.text) or
                    (o.kind == 'label' and not o.text.startswith('Lback')) for o in u)
        if fence:
            n = mi
        else:
            for j in range(mi - 1, max(-1, mi - 400), -1):
                m = M[j][0]
                if any((o.wr & (m.rd | m.wr)) - {'exec'} or (o.rd & m.wr) or ('exec' in o.wr) for o in u):
                    n = j + 1
                    break
        need[k] = max(n, mi - (1 if u[0].kind in ('wait', 'barrier') else 3))
    out = []
    t = 0
    pipe = 0
    oi = mi = 0

    def gap_ok(ins):
        dist = 0
        for p in reversed(out):
            if dist >= 12:
                break
            if p.kind not in ('label', 'dir', 'nop', 'wait') and required_gap(p, ins) > dist:
                return False
            dist += states(p)
        return True

    while oi < len(O) or mi < len(M):
        m_ok = mi < len(M) and M[mi][1] <= oi
        o_ok = oi < len(O) and need[oi] <= mi
        take_m = False
        if m_ok and not o_ok:
            take_m = True
        elif m_ok and o_ok:
            c = ucost(O[oi], out[-1] if out else None)
            mg, og = gap_ok(M[mi][0]), gap_ok(O[oi][0])
            if t >= pipe or t + c > pipe + 1:
                take_m = mg or not og
            else:
                take_m = (not og) and mg
        assert m_ok or o_ok
        if take_m:
            t = max(t, pipe)
            out.append(M[mi][0])
            pipe = t + 4 * mfma_passes(M[mi][0])
            t += 8
            mi += 1
        else:
            t += ucost(O[oi], out[-1] if out else None)
            out += O[oi]
            oi += 1
    return out, t
```

```python
import struct
import sys
import re as _re
from collections import Counter
from asmlib import I, flat, insert_waits, merge_waits, insert_nops, interleave, emit, schedule_mfma

NAME = 'parallel_sum__ssm_conv_h3__mixer_channel_mlp__prompt'
STAMPS = '--stamps' in sys.argv


def f32(x):
    return '0x%08x' % struct.unpack('<I', struct.pack('<f', x))[0]


def v(n, k=1):
    assert n + k <= 144
    return f'v{n}' if k == 1 else f'v[{n}:{n + k - 1}]'


def a(n, k=1):
    assert n + k <= 112
    return f'a{n}' if k == 1 else f'a[{n}:{n + k - 1}]'


def s(n, k=1):
    return f's{n}' if k == 1 else f's[{n}:{n + k - 1}]'


WS_FKV, WS_FH, WS_FY, WS_STAT = 0x0, 0x20000, 0x40000, 0x60000
WS_STAMP = 0x80000
WS_KVT, WS_Y, WS_H, WS_END = 0x100000, 0x500000, 0x900000, 0x1000000
L_KVS = 86016
L_B = 114688
L_XS = L_B
L_HC = L_B
L_XR = L_HC + 16640
L_CS = L_XR + 9216
L_EP = 0
L_GX = 49152
L_KB = 16384
L_SA = 65536
L_SA4 = 147456
assert L_CS + 6144 <= L_SA4
LDS_BYTES = 163840

sW, sPC, sN = 3, 4, 6
sXCD, sLOC, sTB, sFS, sJ, sCB, sWV, sT = 8, 9, 10, 11, 12, 13, 14, 15
pQ, pK, pV, pSH, pHS, pD, pBX, pW1, pB1, pW2, pB2, pOUT, pDBG, pWS = [16 + 2 * i for i in range(14)]
rX, rK, rV, rW1, rW2, rHS, rWS, rOUT = [44 + 4 * i for i in range(8)]
sOX, sW1W, sWI, sXB, sOW1, sLW1 = 76, 77, 78, 79, 80, 81
sGK = 82
sBLK, sOW2, sTCH, sOST, sFHF, sROLE = 84, 85, 86, 87, 88, 89
sM2, sST, sD = 90, 92, 94
sOH, sC8K, sT2, sCNT, sRB, sTH = 96, 97, 98, 99, 100, 101
sHL = 48
sFKV, sFH, sFY, sOKV = 52, 53, 54, 55
sOY, sTILE = 28, 29
sW2B = 16
sSB = 17
sOKS = 18

vL16, vL8, vFL, vN, vP, vPA, vSTMP, vDUM, vSTA = 1, 2, 3, 4, 6, 8, 9, 10, 11
vW2, vB = 12, 16
tL15, tG, tR4, tC4, tL3, tL7 = 128, 129, 130, 131, 132, 133
t0, t1, t2, t3 = 134, 135, 136, 137


class Prog:
    def __init__(self, tag):
        self.p = []
        self.tail = []
        self.tag = tag
        self.names = []
        self.slow = 0


cur = None


def E(*x):
    cur.p.extend(flat(x))


def each(*x):
    return [[i] for i in flat(x)]


def mix(x, y):
    return interleave(x, y) if len(x) >= len(y) else interleave(y, x)


def stamp(name):
    if not STAMPS:
        return []
    n = len(cur.names)
    cur.names.append(name)
    return flat([f's_memtime {s(sST, 2)}', 's_waitcnt lgkmcnt(0)', f'v_writelane_b32 {v(vSTMP)}, {s(sST)}, {n}'])


def srd(r, p, nbytes):
    return [f's_mov_b32 {s(r)}, {s(p)}', f's_and_b32 {s(r + 1)}, {s(p + 1)}, 0xffff',
            f's_mov_b32 {s(r + 2)}, {nbytes}', f's_mov_b32 {s(r + 3)}, 0x20000']


def poll_check(name, cmp, loads):
    idx = cur.slow
    cur.slow += 1
    name = name + cur.tag
    cur.tail.extend(flat([
        f'Lslow_{name}:', f's_mov_b32 {s(sCNT)}, 0',
        f'Lloop_{name}:', 's_sleep 1', loads, 's_waitcnt vmcnt(0)', cmp,
        f's_add_u32 {s(sCNT)}, {s(sCNT)}, 1',
        ([f'v_writelane_b32 {v(vSTMP)}, {s(sCNT)}, {48 + idx}'] if STAMPS else []),
        f's_cmp_ge_u32 {s(sCNT)}, 20000',
        f's_cbranch_scc1 Lback_{name}', 's_nop 4', f's_cbranch_vccnz Lloop_{name}',
        f's_branch Lback_{name}']))
    return flat([cmp, f's_cbranch_vccnz Lslow_{name}', f'Lback_{name}:'])


POLL_LD = f'buffer_load_dwordx2 {v(vP, 2)}, {v(vPA)}, {s(rWS, 4)}, 0 offen sc1'
POLL_CMP = f'v_cmp_ne_u64 vcc, {s(sN, 2)}, {v(vP, 2)}'
NONCE_LD = f'buffer_load_dwordx2 {v(vN, 2)}, off, {s(rOUT, 4)}, 0 sc1'
NONCE_CHK = lambda: poll_check('nonce', f'v_cmp_eq_u64 vcc, 0, {v(vN, 2)}', NONCE_LD) + flat(
    [f'v_readfirstlane_b32 {s(sN)}, {v(vN)}', f'v_readfirstlane_b32 {s(sN + 1)}, {v(vN + 1)}', srd(rOUT, pOUT, 0x200000)])

P = cur = Prog('P')
E(f's_cmp_ge_u32 s2, 0x100', 's_cbranch_scc1 Lend')
E(f's_load_dwordx16 {s(16, 16)}, s[0:1], 0', f's_load_dwordx8 {s(32, 8)}, s[0:1], 64',
  f's_load_dwordx4 {s(40, 4)}, s[0:1], 96')
if STAMPS:
    E(f'v_mov_b32 {v(vSTMP)}, 0', f's_memrealtime {s(sST, 2)}', 's_waitcnt lgkmcnt(0)', f'v_writelane_b32 {v(vSTMP)}, {s(sST)}, 62')
E(stamp('start'))
E(f'v_lshrrev_b32 {v(t0)}, 6, v0', f's_getpc_b64 {s(sPC, 2)}', 'Lpc:',
  f'v_readfirstlane_b32 {s(sWV)}, {v(t0)}',
  f'v_and_b32 v0, 63, v0',
  f's_and_b32 {s(sXCD)}, s2, 7', f's_lshr_b32 {s(sLOC)}, s2, 3',
  f's_lshl3_add_u32 {s(sT)}, {s(sLOC)}, {s(sWV)}', f's_lshl_b32 {s(sT)}, {s(sT)}, 7', f's_min_u32 {s(sT)}, {s(sT)}, Lcode_end-Lpc-4',
  f'v_mov_b32 {v(t1)}, {s(sT)}',
  f'global_load_dword {v(vDUM)}, {v(t1)}, {s(sPC, 2)}',
  f's_and_b32 {s(sW)}, {s(sWV)}, 3', f's_lshr_b32 {s(sROLE)}, {s(sWV)}, 2',
  f's_lshl2_add_u32 {s(sWI)}, {s(sLOC)}, {s(sW)}',
  f's_and_b32 {s(sFHF)}, {s(sXCD)}, 1', f's_and_b32 {s(sJ)}, {s(sLOC)}, 7',
  f's_lshr_b32 {s(sTCH)}, {s(sXCD)}, 1', f's_lshr_b32 {s(sT)}, {s(sLOC)}, 3', f's_lshl2_add_u32 {s(sTB)}, {s(sTCH)}, {s(sT)}',
  f's_lshl3_add_u32 {s(sFS)}, {s(sFHF)}, {s(sJ)}', f's_and_b32 {s(sTH)}, {s(sJ)}, 1',
  f'v_lshrrev_b32 {v(tL3)}, 3, v0', f'v_and_b32 {v(tL7)}, 7, v0', f'v_lshrrev_b32 {v(tG)}, 4, v0', f'v_and_b32 {v(tC4)}, 3, v0',
  f'v_lshlrev_b32 {v(vL16)}, 4, v0', f'v_lshlrev_b32 {v(vL8)}, 3, v0',
  f's_cmp_eq_u32 {s(sROLE)}, 1', 's_waitcnt lgkmcnt(0)', 's_cbranch_scc1 LB')


def common_setup():
    E(srd(rWS, pWS, WS_END), srd(rW2, pW2, 1792 * 1024),
      f'v_and_b32 {v(tL15)}, 15, v0', f'v_bfe_u32 {v(tR4)}, v0, 2, 2', f'v_lshlrev_b32 {v(vSTA)}, 4, {v(tL15)}',
      f's_lshr_b32 {s(sCB)}, {s(sJ)}, 1', f's_lshl2_add_u32 {s(sCB)}, {s(sFHF)}, {s(sCB)}',
      f's_lshl_b32 {s(sRB)}, {s(sW)}, 12',
      f's_mul_i32 {s(sT)}, {s(sW)}, {224 * 1024}', f's_lshl_b32 {s(sT2)}, {s(sCB)}, 7', f's_add_u32 {s(sT)}, {s(sT)}, {s(sT2)}',
      f'v_lshlrev_b32 {v(t0)}, 1, {v(tG)}', f'v_xor_b32 {v(t0)}, {v(tL7)}, {v(t0)}', f'v_lshlrev_b32 {v(t0)}, 4, {v(t0)}',
      f'v_lshl_add_u32 {v(t0)}, {v(tL3)}, 10, {v(t0)}', f'v_add_u32 {v(vW2)}, {s(sT)}, {v(t0)}',
      [f'v_add_u32 {v(vW2 + i)}, {7168 * i}, {v(vW2)}' for i in range(1, 4)],
      f'v_lshl_add_u32 {v(t0)}, {v(tG)}, 2, {v(tR4)}', f'v_bfe_u32 {v(t1)}, {v(t0)}, 1, 2',
      f'v_lshlrev_b32 {v(t0)}, 7, {v(t0)}', f'v_lshl_add_u32 {v(t0)}, {v(tC4)}, 3, {v(t0)}',
      f'v_lshl_add_u32 {v(t0)}, {v(t1)}, 5, {v(t0)}')
    if cur.tag == 'A':
        E(f's_add_u32 {s(sSB)}, {s(sRB)}, {L_SA}', f'v_xor_b32 {v(t0)}, 64, {v(t0)}')
    else:
        E(f's_mov_b32 {s(sSB)}, {s(sRB)}')
    E(f'v_add_u32 {v(vB)}, {s(sSB)}, {v(t0)}', [f'v_xor_b32 {v(vB + t)}, {32 * t}, {v(vB)}' for t in range(1, 4)],
      f's_lshl1_add_u32 {s(sCNT)}, {s(sTB)}, {s(sTH)}', f's_lshl2_add_u32 {s(sTILE)}, {s(sCNT)}, {s(sW)}')
    for o in range(4):
        E(f's_add_u32 {s(sT)}, {s(sW)}, {1 + o}', f's_and_b32 {s(sT)}, {s(sT)}, 3',
          f's_lshl2_add_u32 {s(sT)}, {s(sCNT)}, {s(sT)}', f's_lshl3_add_u32 {s(sT)}, {s(sT)}, {s(sWV)}',
          f's_mul_i32 {s(sHL + o)}, {s(sT)}, {2 * 3584}', f's_add_u32 {s(sHL + o)}, {s(sHL + o)}, {WS_H}')


def w1_tr_base(dst):
    E(f'v_lshl_add_u32 {v(t0)}, {v(tG)}, 3, {v(tR4)}', f'v_lshlrev_b32 {v(t0)}, 6, {v(t0)}',
      f'v_lshl_add_u32 {v(t0)}, {v(tC4)}, 3, {v(t0)}',
      f'v_and_b32 {v(t1)}, 1, {v(tG)}', f'v_lshlrev_b32 {v(t1)}, 5, {v(t1)}',
      f'v_add_u32 {v(dst)}, {v(t0)}, {v(t1)}', f'v_xor_b32 {v(dst + 1)}, 32, {v(dst)}',
      f'v_lshrrev_b32 {v(t2)}, 1, {v(tG)}', f'v_lshl_add_u32 {v(t2)}, {v(t2)}, 3, {v(tR4)}', f'v_lshlrev_b32 {v(t2)}, 6, {v(t2)}',
      f'v_lshl_add_u32 {v(t2)}, {v(tC4)}, 3, {v(t2)}', f'v_add_u32 {v(dst + 2)}, {v(t2)}, {v(t1)}')


def dbg_srd(pub):
    E(f's_mov_b32 {s(rOUT)}, {s(pDBG)}', f's_and_b32 {s(rOUT + 1)}, {s(pDBG + 1)}, 0xffff', f's_mov_b32 {s(rOUT + 2)}, 8',
      f's_mov_b32 {s(rOUT + 3)}, 0x20000',
      f'v_cmp_eq_u32 vcc, 0, v0', f'v_mov_b32 {v(t0)}, 0x80000000', 's_nop 0', f'v_cndmask_b32_e64 {v(vFL)}, {v(t0)}, 0, vcc')


def D2(k, buf, forA=False, after=()):
    res = []
    role_off = 896 * 1024 if (cur.tag == 'B' and not forA) else 0
    base = f's_add_u32 m0, {s(sRB)}, {(L_SA + 16384 * buf) if buf < 3 else L_SA4}' if (forA or cur.tag == 'A') else f's_add_u32 m0, {s(sRB)}, {16384 * buf}'
    it = [base, f's_mov_b32 {s(sOW2)}, {32768 * k + role_off}']
    nm = 'w2a' if forA else 'w2d'
    for i in range(4):
        it.append(I(f'buffer_load_dwordx4 {v(vW2 + i)}, {s(rW2, 4)}, {s(sOW2)} offen offset:{1024 * i} lds', tok=f'{nm}_{k}_{i}',
                    after=(after if i == 0 else ())))
        res.append(flat(it))
        it = []
    return res


def T2(k, buf, dep=True, ad=None):
    res = []
    ad = vB if ad is None else ad
    for h in range(2):
        for t in range(4):
            res.append([I(f'ds_read_b64_tr_b16 {a(16 * k + 4 * t + 2 * h, 2)}, {v(ad + t)} offset:{16384 * buf + 2048 * h}',
                          tok=f'w2t_{k}_{h * 4 + t}', after=([f'w2d_{k}_3'] if dep else []))])
    return res


g2acc = [40, 56]
vH = [72, 100]


def h_loads(o):
    out = []
    hi_done = [False]
    for kap in range(7):
        r = vH[o & 1] + 4 * kap
        if kap < 3:
            out.append([I(f'buffer_load_dwordx4 {v(r, 4)}, {v(vL16)}, {s(rWS, 4)}, {s(sHL + o)} offen offset:{1024 * kap} sc1')])
        elif kap == 3:
            out.append(flat([f'buffer_load_dwordx2 {v(r, 2)}, {v(vL8)}, {s(rWS, 4)}, {s(sHL + o)} offen offset:3072 sc1',
                             f's_add_u32 {s(sHL + o)}, {s(sHL + o)}, 3584',
                             f'buffer_load_dwordx2 {v(r + 2, 2)}, {v(vL8)}, {s(rWS, 4)}, {s(sHL + o)} offen offset:3072 sc1']))
        else:
            out.append([I(f'buffer_load_dwordx4 {v(r, 4)}, {v(vL16)}, {s(rWS, 4)}, {s(sHL + o)} offen offset:{1024 * (kap - 4)} sc1')])
    return out


def g2_mfma(o, ts=(0, 1, 2, 3)):
    out = []
    acc = g2acc[o & 1]
    for kap in range(7):
        grp = []
        for t in ts:
            d = v(acc + 4 * t, 4)
            c = '0' if kap == 0 else d
            grp.append(I(f'v_mfma_f32_16x16x32_bf16 {d}, {a(16 * kap + 4 * t, 4)}, {v(vH[o & 1] + 4 * kap, 4)}, {c}'))
        out.append(grp)
    return out


hpoll_addr = lambda: each(
    f's_lshl1_add_u32 {s(sT)}, {s(sTB)}, {s(sTH)}', f's_lshl4_add_u32 {s(sT)}, {s(sT)}, {s(sWV)}', f's_lshl_b32 {s(sT)}, {s(sT)}, 8',
    f's_add_u32 {s(sT)}, {s(sT)}, {WS_FH}',
    f'v_lshrrev_b32 {v(vPA)}, 5, v0', f'v_lshl_add_u32 {v(vPA)}, {v(vPA)}, 11, {s(sT)}',
    f'v_bfe_u32 {v(vP)}, v0, 4, 1', f'v_lshl_add_u32 {v(vPA)}, {v(vP)}, 7, {v(vPA)}')


def gemm2(extra0):
    role = 0 if cur.tag == 'A' else 1
    vGW, vGW2, vGR, vEPA, vED, vED2, vYT, vYL, vEL, vB2A = 20, 21, 22, 23, 24, 25, 26, 27, 28, 29
    tt0, tt1 = 30, 31
    est, eb, ex, yr = 32, 36, 6, 12
    ex = 140
    sm, xn = 128, 136

    def gx_write(o, halves):
        acc = g2acc[o & 1]
        out = each(f's_add_u32 {s(sT)}, {s(sW)}, {1 + o}', f's_and_b32 {s(sT)}, {s(sT)}, 3', f's_mul_i32 {s(sT)}, {s(sT)}, 14336',
                   f's_add_u32 {s(sT)}, {s(sT)}, {L_GX + 4096 * o}', f'v_add_u32 {v(vGW)}, {s(sT)}, {v(vL16)}')
        for lh in halves:
            ph = lh ^ role ^ 1
            sl = 2048 * (lh ^ 1) if o < 3 else 0
            out += each([I(f'ds_write_b128 {v(vGW)}, {v(acc + 8 * lh + 4 * e, 4)} offset:{4 * 14336 * ph + sl + 1024 * e}', tok=f'gxw{o}{lh}{e}')
                         for e in range(2)])
        return out

    addr = each(
        f's_lshl_b32 {s(sT)}, {s(sTILE)}, 14', f's_lshl_b32 {s(sT2)}, {s(sCB)}, 7', f's_add_u32 {s(sT2)}, {s(sT2)}, {64 * role}',
        f's_add_u32 {s(sT)}, {s(sT)}, {s(sT2)}',
        f'v_lshrrev_b32 {v(tt0)}, 4, v0', f'v_lshl_add_u32 {v(vB2A)}, {v(tt0)}, 3, {s(sT2)}',
        f'v_xor_b32 {v(tt0)}, v0, {v(tt0)}', f'v_and_b32 {v(tt0)}, 3, {v(tt0)}', f'v_lshl_add_u32 {v(tt0)}, {v(tt0)}, 4, {s(sT)}',
        f'v_lshrrev_b32 {v(tt1)}, 2, v0', f'v_lshl_add_u32 {v(vEPA)}, {v(tt1)}, 10, {v(tt0)}',
        f'v_lshlrev_b32 {v(tt1)}, 13, {v(tt1)}', f'v_and_b32 {v(tt0)}, 3, v0', f'v_lshl_add_u32 {v(vYL)}, {v(tt0)}, 4, {v(tt1)}',
        f's_lshl_b32 {s(sT)}, {s(sTILE)}, 6', f's_lshl_b32 {s(sT2)}, {s(sCB)}, 19', f's_add_u32 {s(sT)}, {s(sT)}, {s(sT2)}',
        f's_add_u32 {s(sOKV)}, {s(sT)}, {WS_Y + role * 32 * 8192}', f's_add_u32 {s(sFY)}, {s(sOKV)}, {16 * 8192}',
        f's_lshl_b32 {s(sBLK)}, {s(sWV)}, 11', f's_add_u32 {s(sBLK)}, {s(sBLK)}, {L_EP}',
        f'v_add_u32 {v(vEL)}, {s(sBLK)}, {v(vL16)}',
        f'v_bfe_u32 {v(tt0)}, v0, 2, 2', f'v_lshrrev_b32 {v(tt1)}, 5, v0', f'v_xor_b32 {v(tt0)}, {v(tt0)}, {v(tt1)}',
        f'v_lshlrev_b32 {v(tt0)}, 4, {v(tt0)}', f'v_lshl_add_u32 {v(tt0)}, {v(vSTA)}, 2, {v(tt0)}',
        f'v_bfe_u32 {v(tt1)}, v0, 4, 1', f'v_lshl_add_u32 {v(tt0)}, {v(tt1)}, 3, {v(tt0)}',
        f'v_add_u32 {v(vED)}, {s(sBLK)}, {v(tt0)}', f'v_xor_b32 {v(vED2)}, 32, {v(vED)}',
        f'v_add_u32 {v(vYT)}, {s(sBLK)}, {v(vL8)}',
        f's_mul_i32 {s(sT)}, {s(sWV)}, 14336', f's_add_u32 {s(sT)}, {s(sT)}, {L_GX}', f'v_add_u32 {v(vGR)}, {s(sT)}, {v(vL16)}')
    ep_loads = [flat([f'buffer_load_dwordx4 {v(sm, 4)}, {v(vEPA)}, {s(rX, 4)}, 0 offen']),
                flat([f's_lshl_b32 {s(sT2)}, {s(sTILE)}, 8', f's_add_u32 {s(sT2)}, {s(sT2)}, {WS_STAT}',
                      f'buffer_load_dwordx4 {v(est, 4)}, {v(vSTA)}, {s(rWS, 4)}, {s(sT2)} offen sc1'])]
    ep_loads += each([f'global_load_dwordx2 {v(eb + 2 * t, 2)}, {v(vB2A)}, {s(pB2, 2)} offset:{32 * t}' for t in range(2)])
    ep_pre = each(f'ds_write_b128 {v(vEL)}, {v(sm, 4)}', [f'ds_read_b64 {v(ex + 2 * t, 2)}, {v(vED + t)}' for t in range(2)])
    for t in range(2):
        for e in range(4):
            rx, rb = ex + 2 * t + (e >> 1), eb + 2 * t + (e >> 1)
            un = (lambda d, r: f'v_and_b32 {v(d)}, 0xffff0000, {v(r)}') if e & 1 else (lambda d, r: f'v_lshlrev_b32 {v(d)}, 16, {v(r)}')
            o_, n_ = sm + 4 * t + e, xn + 4 * t + e
            ep_pre += each(un(n_, rx), un(o_, rb), f'v_add_f32 {v(o_)}, {v(o_)}, {v(n_)}', f'v_sub_f32 {v(n_)}, {v(n_)}, {v(est)}',
                           f'v_mul_f32 {v(n_)}, {v(n_)}, {v(est + 1)}')

    def with_loads(M, H):
        return [m + h for m, h in zip(M, H)]

    Y_LD = [f'buffer_load_dwordx4 {v(yr, 4)}, {v(vYL)}, {s(rWS, 4)}, {s(sOKV)} offen sc1',
            f'buffer_load_dwordx4 {v(yr + 4, 4)}, {v(vYL)}, {s(rWS, 4)}, {s(sFY)} offen sc1']
    Y_CMP = [f'v_cmp_ne_u64 vcc, {s(sN, 2)}, {v(yr + 2, 2)}', f'v_cmp_ne_u64 {s(sM2, 2)}, {s(sN, 2)}, {v(yr + 6, 2)}',
             f's_or_b64 vcc, vcc, {s(sM2, 2)}']
    E(interleave(with_loads(g2_mfma(0), h_loads(2)), addr))
    E(stamp('g2t0'))
    if role == 0:
        E('s_barrier', stamp('b6'))
    E(interleave(with_loads(g2_mfma(1), h_loads(3)), gx_write(0, (0, 1)) + ep_loads))
    E(Y_LD)
    E(stamp('g2t1'))
    M2 = g2_mfma(2)
    E(interleave(M2[:3], gx_write(1, (0, 1))))
    E(I('s_barrier', after=['gxw111']))
    E(interleave(M2[3:], ep_pre))
    E(stamp('g2t2'))
    yt = 36
    ysw = [poll_check('y', Y_CMP, Y_LD)]
    ysw += each([f'ds_write_b64 {v(vYT)}, {v(yr + 4 * t, 2)} offset:{1024 + 512 * t}' for t in range(2)],
                [f'ds_read_b64_tr_b16 {v(yt + 2 * t, 2)}, {v(vYT)} offset:{1024 + 512 * t}' for t in range(2)])
    for t in range(2):
        for e in range(4):
            ry = yt + 2 * t + (e >> 1)
            un = (lambda d, r: f'v_and_b32 {v(d)}, 0xffff0000, {v(r)}') if e & 1 else (lambda d, r: f'v_lshlrev_b32 {v(d)}, 16, {v(r)}')
            b = tt0 + (e & 1)
            ysw += each(un(b, ry), f'v_fmac_f32 {v(sm + 4 * t + e)}, {v(xn + 4 * t + e)}, {v(b)}')
    pr = [72 + 4 * i for i in range(7)] + [32]
    pre = each([f'ds_read_b128 {v(pr[i], 4)}, {v(vGR)} offset:{1024 * i}' for i in range(8)])
    for i in range(8):
        pre += each([f'v_add_f32 {v(sm + 4 * (i & 1) + e)}, {v(sm + 4 * (i & 1) + e)}, {v(pr[i] + e)}' for e in range(4)])
    E(interleave(g2_mfma(3, (0, 1)), gx_write(2, (0, 1)) + pre))
    M3 = g2_mfma(3, (2, 3))
    E(interleave(M3[:3], gx_write(3, (0,))))
    E(I('s_barrier', after=['gxw301']))
    E([f'ds_read_b128 {v(pr[i], 4)}, {v(vGR)} offset:{1024 * (8 + i)}' for i in range(6)])
    E(interleave(M3[3:], ysw))
    E(stamp('g2t3'))
    for i in range(6):
        d = sm + 4 * (i & 1)
        E(f'v_pk_add_f32 {v(d, 2)}, {v(d, 2)}, {v(pr[i], 2)}', f'v_pk_add_f32 {v(d + 2, 2)}, {v(d + 2, 2)}, {v(pr[i] + 2, 2)}')
    acc = g2acc[1] + 8
    for t in range(2):
        E(f'v_pk_add_f32 {v(sm + 4 * t, 2)}, {v(sm + 4 * t, 2)}, {v(acc + 4 * t, 2)}',
          f'v_pk_add_f32 {v(sm + 4 * t + 2, 2)}, {v(sm + 4 * t + 2, 2)}, {v(acc + 4 * t + 2, 2)}',
          f'v_cvt_pk_bf16_f32 {v(yt + 2 * t)}, {v(sm + 4 * t)}, {v(sm + 4 * t + 1)}',
          f'v_cvt_pk_bf16_f32 {v(yt + 2 * t + 1)}, {v(sm + 4 * t + 2)}, {v(sm + 4 * t + 3)}')
    E([f'ds_write_b64 {v(vED + t)}, {v(yt + 2 * t, 2)}' for t in range(2)],
      f'ds_read_b128 {v(72, 4)}, {v(vEL)}',
      f'buffer_store_dwordx4 {v(72, 4)}, {v(vEPA)}, {s(rOUT, 4)}, 0 offen')
    if STAMPS:
        E(stamp('st'))
        E('s_waitcnt vmcnt(0)')
        E(stamp('end'))
        E(f's_memrealtime {s(sST, 2)}', 's_waitcnt lgkmcnt(0)', f'v_writelane_b32 {v(vSTMP)}, {s(sST)}, 63',
          f's_lshl3_add_u32 {s(sT)}, s2, {s(sWV)}', f's_lshl_b32 {s(sT)}, {s(sT)}, 8', f's_add_u32 {s(sT)}, {s(sT)}, {WS_STAMP}',
          f'v_lshlrev_b32 {v(20)}, 2, v0',
          f'buffer_store_dword {v(vSTMP)}, {v(20)}, {s(rWS, 4)}, {s(sT)} offen')
    E('s_endpgm')


A = cur = Prog('A')
A.names = list(P.names)
vXD, vXR, vA = 20, 24, 26
str_ = 32
vG16 = vP
vACC = 88
aRING, aSEL, aCS = 0, 32, 60
sBP = 20
sXH = sW1W
E(srd(rX, pQ, 0x200000),
  f's_lshl2_add_u32 {s(sT2)}, {s(sTB)}, {s(sW)}', f's_lshl_b32 {s(sT2)}, {s(sT2)}, 15',
  f'v_xor_b32 {v(t0)}, {v(tL7)}, {v(tG)}', f'v_lshlrev_b32 {v(t0)}, 4, {v(t0)}',
  f'v_lshl_add_u32 {v(t0)}, {v(tL3)}, 10, {v(t0)}',
  f'v_add_u32 {v(vXD)}, {s(sT2)}, {v(t0)}',
  f'v_xor_b32 {v(t0)}, 64, {v(vXD)}', f'v_add_u32 {v(vXD + 1)}, 7168, {v(t0)}',
  f'v_add_u32 {v(vXD + 2)}, 14336, {v(vXD)}', f'v_add_u32 {v(vXD + 3)}, 14336, {v(vXD + 1)}',
  f's_mul_i32 {s(sXB)}, {s(sW)}, 12288', f's_add_u32 {s(sXB)}, {s(sXB)}, {L_XS}',
  f's_lshr_b32 {s(sXH)}, {s(sW)}, 1', f's_lshl_b32 {s(sXH)}, {s(sXH)}, 7')


def x_dma(h):
    items = []
    pre = [f's_add_u32 m0, {s(sXB)}, {4096 * (h % 3)}', f's_xor_b32 {s(sOX)}, {s(sXH)}, {128 * h}']
    for i in range(4):
        aft = [f'xr_{h - 3}_3'] if (h >= 3 and i == 0) else []
        items.append(flat(pre + [I(f'buffer_load_dwordx4 {v(vXD + i)}, {s(rX, 4)}, {s(sOX)} offen offset:{1024 * i} lds',
                                   tok=f'xd_{h}_{i}', after=aft)]))
        pre = []
    return items


def xf(kb, tt):
    sl, o = (kb >> 1) % 6, ((kb & 1) * 2 + tt) * 4
    return v(40 + 16 * sl + o, 4) if sl < 3 else a(64 + 16 * (sl - 3) + o, 4)


def x_read(h):
    out = []
    n = 0
    for pp in range(2):
        for tt in range(2):
            out.append(I(f'ds_read_b128 {xf(2 * h + pp, tt)}, {v(vXR + pp)} offset:{4096 * (h % 3) + 2048 * tt}',
                         tok=f'xr_{h}_{n}', after=[f'xd_{h}_3']))
            n += 1
    return out


E(x_dma(0))
dbg_srd(True)
E(f's_memrealtime {s(sN, 2)}',
  f's_or_b32 {s(sT2)}, s2, {s(sW)}', f's_cmp_eq_u32 {s(sT2)}, 0', f's_cselect_b32 {s(sT2)}, 0, 64',
  's_waitcnt lgkmcnt(0)', f's_or_b32 {s(sCNT)}, {s(sN)}, 1',
  f'v_mov_b32 {v(vN)}, {s(sCNT)}', f'v_mov_b32 {v(vN + 1)}, {s(sN + 1)}',
  f'buffer_store_dwordx2 {v(vN, 2)}, {v(vFL)}, {s(rOUT, 4)}, {s(sT2)} offen sc1')
sx = 112
E(f's_lshl4_add_u32 {s(sT2)}, {s(sTB)}, {s(sFS)}', f's_lshl2_add_u32 {s(sT2)}, {s(sT2)}, {s(sW)}', f's_lshl_b32 {s(sT2)}, {s(sT2)}, 11',
  f'buffer_load_dwordx4 {v(sx, 4)}, {v(vL16)}, {s(rX, 4)}, {s(sT2)} offen',
  f'buffer_load_dwordx4 {v(sx + 4, 4)}, {v(vL16)}, {s(rX, 4)}, {s(sT2)} offen offset:1024',
  )
E(stamp('first'))
common_setup()
w1_tr_base(vA + 3)
E(f'v_mov_b32 {v(t1)}, 0x3f803f80')
for u in range(7):
    E(f'v_cmp_eq_u32 vcc, {u}, {v(tL15)}', f's_xor_b32 {s(sT)}, {s(sW)}, {u & 3}', f's_mul_i32 {s(sBP + (u & 3))}, {s(sT)}, 7168',
      f'v_cndmask_b32 {v(t2)}, 0, {v(t1)}, vcc',
      [f'v_accvgpr_write_b32 {a(aSEL + 4 * u + i)}, {v(t2)}' for i in range(4)])
E(f's_and_b32 {s(sT)}, {s(sW)}, 1', f's_lshl_b32 {s(sT)}, {s(sT)}, 2',
  f's_lshl_b32 {s(sT2)}, {s(sW)}, 10', f's_add_u32 {s(sT2)}, {s(sT2)}, {L_CS}', f'v_add_u32 {v(vP + 1)}, {s(sT2)}, {v(vL16)}',
  f'v_lshrrev_b32 {v(t0)}, 1, {v(tL15)}', f'v_xor_b32 {v(t0)}, {v(t0)}, {v(tG)}', f'v_xor_b32 {v(t0)}, {s(sT)}, {v(t0)}',
  f'v_lshlrev_b32 {v(t0)}, 4, {v(t0)}', f'v_lshl_add_u32 {v(t0)}, {v(tL15)}, 7, {v(t0)}',
  f'v_add_u32 {v(vXR)}, {s(sXB)}, {v(t0)}', f'v_xor_b32 {v(vXR + 1)}, 64, {v(vXR)}',
  f'v_lshlrev_b32 {v(t0)}, 4, {v(tG)}', f'v_add_u32 {v(vG16)}, {L_CS + 4096}, {v(t0)}')
K1 = -2.0 * 1.4426950408889634 * 0.7978845608028654
E(f's_mov_b32 {s(sGK)}, {f32(K1)}', f's_mov_b32 {s(sGK + 1)}, {f32(K1 * 0.044715)}',
  f's_lshl2_add_u32 {s(sT)}, {s(sTB)}, {s(sW)}',
  f's_lshl_b32 {s(sOST)}, {s(sT)}, 9', f's_add_u32 {s(sOST)}, {s(sOST)}, {WS_STAT}',
  f's_lshl4_add_u32 {s(sT2)}, {s(sT)}, {s(sFS)}', f's_lshl_b32 {s(sFH)}, {s(sT2)}, 7', f's_add_u32 {s(sFH)}, {s(sFH)}, {WS_FH}',
  f's_lshl_b32 {s(sT2)}, {s(sT)}, 5', f's_add_u32 {s(sT2)}, {s(sT2)}, {s(sFS)}', f's_mul_i32 {s(sOH)}, {s(sT2)}, 3584',
  f's_add_u32 {s(sOH)}, {s(sOH)}, {WS_H}', f's_add_u32 {s(sOY)}, {s(sOH)}, {16 * 3584}')
E(x_dma(1))
E(stamp('setup'))
rec, q = 120, 124
E(f's_mov_b32 {s(sT)}, 0x3f803f80')
for i in range(4):
    c = '0' if i == 0 else None
    for r in range(2):
        E(f'v_dot2_f32_bf16 {v(q + r)}, {v(sx + 4 * r + i)}, {s(sT)}, {c or v(q + r)}',
          f'v_dot2_f32_bf16 {v(q + 2 + r)}, {v(sx + 4 * r + i)}, {v(sx + 4 * r + i)}, {c or v(q + 2 + r)}')
E(f's_mul_i32 {s(sT2)}, {s(sW)}, 7168', f's_add_u32 {s(sT2)}, {s(sT2)}, {L_KVS + 5120}',
  f'v_permlane32_swap_b32 {v(q)}, {v(q + 1)}', f'v_permlane32_swap_b32 {v(q + 2)}, {v(q + 3)}',
  f'v_add_f32 {v(q)}, {v(q)}, {v(q + 1)}', f'v_add_f32 {v(q + 2)}, {v(q + 2)}, {v(q + 3)}',
  f'v_add_u32 {v(t0)}, {s(sT2)}, {v(vL8)}',
  f'v_permlane16_swap_b32 {v(q)}, {v(q + 2)}', f'v_add_f32 {v(q)}, {v(q)}, {v(q + 2)}',
  [f'v_add_f32_dpp {v(q)}, {v(q)}, {v(q)} row_ror:{k} row_mask:0xf bank_mask:0xf' for k in (8, 4, 2, 1)],
  f'v_mov_b32 {v(q + 1)}, {v(q)}', f'v_permlane16_swap_b32 {v(q)}, {v(q + 1)}',
  f'v_mul_f32 {v(rec)}, {f32(1 / 512)}, {v(q)}', f'v_mul_f32 {v(q + 1)}, {f32(1 / 512)}, {v(q + 1)}',
  f'v_fma_f32 {v(q + 1)}, -{v(rec)}, {v(rec)}, {v(q + 1)}', f'v_max_f32 {v(q + 1)}, 0, {v(q + 1)}',
  f'v_add_f32 {v(q + 1)}, {f32(1e-5)}, {v(q + 1)}', f'v_rsq_f32 {v(rec + 1)}, {v(q + 1)}',
  I(f'ds_write_b64 {v(t0)}, {v(rec, 2)}', tok='recw'))
E(stamp('stats'))

LOOK = 5


def acc1(u, tt):
    return vACC + (u * 2 + tt) * 4


def w1_reads(n):
    kb, u = n // 7, n % 7
    r = aRING + 4 * (n % 8)
    out = []
    if n % 28 == 0:
        out += stamp('pre0') if n == 0 else []
        out.append(I('s_barrier', after={84: ['xr_7_3'], 0: ['recw']}.get(n, [])))
        out += stamp('bar0') if n == 0 else []
    if u == 0:
        out += flat([f's_add_u32 {s(sBLK)}, {s(sBP + (kb & 3))}, {(kb >> 2) * 28672}',
                     [f'v_add_u32 {v(vA + i)}, {s(sBLK)}, {v(vA + 3 + i)}' for i in range(3)]])
    for h in range(2):
        if u < 6:
            out.append(I(f'ds_read_b64_tr_b16 {a(r + 2 * h, 2)}, {v(vA + (u & 1))} offset:{2048 * (u >> 1) + 256 * h}', tok=f'w1r_{n}_{h}'))
        else:
            out.append(I(f'ds_read_b64_tr_b16 {a(r + 2 * h, 2)}, {v(vA + 2)} offset:{6144 + 256 * h}', tok=f'w1r_{n}_{h}'))
    return out


def g1_step(n):
    kb, u = n // 7, n % 7
    r = aRING + 4 * (n % 8)
    out = []
    for tt in range(2):
        c = '0' if kb == 0 else v(acc1(u, tt), 4)
        out.append(I(f'v_mfma_f32_16x16x32_bf16 {v(acc1(u, tt), 4)}, {a(r, 4)}, {xf(kb, tt)}, {c}',
                     after=([f'w1r_{n + 1}_1'] if (n % 2 == 0 and tt == 0) else [])))
    if kb & 3 == 0:
        c = '0' if n == 0 else a(aCS, 4)
        out.append(I(f'v_mfma_f32_16x16x32_bf16 {a(aCS, 4)}, {a(r, 4)}, {a(aSEL + 4 * u, 4)}, {c}'))
    return out


STAT_LD = [f'buffer_load_dwordx4 {v(str_ + 4 * tt, 4)}, {v(vSTA)}, {s(rWS, 4)}, {s(sOST)} offen offset:{256 * tt} sc1' for tt in range(2)]
STAT_CMP = [f'v_cmp_ne_u64 vcc, {s(sN, 2)}, {v(str_ + 2, 2)}', f'v_cmp_ne_u64 {s(sM2, 2)}, {s(sN, 2)}, {v(str_ + 6, 2)}',
            f's_or_b64 vcc, vcc, {s(sM2, 2)}']
vR, vRM = str_ + 2, str_ + 6
post = [poll_check('stat', STAT_CMP, STAT_LD)]
for tt in range(2):
    R, r1 = vR + tt, str_ + 4 * tt + 1
    post += each(f'v_mul_f32 {v(R)}, {v(r1)}, {v(r1)}', f'v_mul_f32 {v(R)}, {f32(1e-5)}, {v(R)}', f'v_sub_f32 {v(R)}, {f32(1.0 + 1e-5)}, {v(R)}',
                 f'v_rsq_f32 {v(R)}, {v(R)}', f'v_mul_f32 {v(R)}, {v(R)}, {v(r1)}')
post += each([f'v_mul_f32_e64 {v(vRM + tt)}, -{v(vR + tt)}, {v(str_ + 4 * tt)}' for tt in range(2)])

E(x_read(0))
for n in range(LOOK):
    E(w1_reads(n))
sideA = {h: [] for h in range(8)}
sideA[0] = x_dma(2) + each(x_read(1)) + x_dma(3)
sideA[1] = x_dma(4) + [[I(NONCE_LD)]] + [[], [], []] + each(x_read(2))
sideA[2] = x_dma(5) + each(x_read(3)) + x_dma(6)
sideA[3] = each(x_read(4)) + x_dma(7) + [[], [], [], []]
sideA[4] = each(x_read(5)) + [NONCE_CHK(), [], [], []] + each(x_read(6))
sideA[5] = [[], [], [], []] + each(x_read(7)) + [[], [], [], []]
sideA[6] = each(STAT_LD) + [[], [], [], [I(f'ds_write_b128 {v(vP + 1)}, {a(aCS, 4)}', tok='csw')], [I('s_barrier', after=['csw'])]]
sideA[7] = [[], [], [], [], [], [], []] + post
for h in range(8):
    steps = []
    for n in range(14 * h, 14 * h + 14):
        it = []
        if n + LOOK < 112:
            it += w1_reads(n + LOOK)
        it += g1_step(n)
        steps.append(it)
    E(interleave(steps, sideA[h], end=(12 if h < 6 else 14)))
    if h in (3, 7):
        E(stamp(f'h{h}'))
E('s_setprio 3', 's_barrier')
E(stamp('b4'))

gt = 40
vCB = 72
po = [20, 24, 28]


def gelu_pair(accr, c, tt, dst):
    t = gt + 8 * c
    return None


def gelu_chain(accr, csr, b1r_, tt, dst, c):
    t = gt + 8 * c
    sel = f'op_sel:[0,{tt},0] op_sel_hi:[1,{tt},1]'
    return [
        f'v_pk_fma_f32 {v(t, 2)}, {v(csr, 2)}, {v(vRM, 2)}, {v(b1r_, 2)} {sel}',
        f'v_pk_fma_f32 {v(t, 2)}, {v(accr, 2)}, {v(vR, 2)}, {v(t, 2)} {sel}',
        f'v_pk_mul_f32 {v(t + 2, 2)}, {v(t, 2)}, {v(t, 2)}',
        f'v_pk_fma_f32 {v(t + 2, 2)}, {v(t + 2, 2)}, {s(sGK, 2)}, {s(sGK, 2)} op_sel:[0,1,0] op_sel_hi:[1,1,0]',
        f'v_pk_mul_f32 {v(t + 2, 2)}, {v(t + 2, 2)}, {v(t, 2)}',
        f'v_exp_f32 {v(t + 4)}, {v(t + 2)}', f'v_exp_f32 {v(t + 5)}, {v(t + 3)}',
        f'v_pk_add_f32 {v(t + 4, 2)}, {v(t + 4, 2)}, 1.0 op_sel_hi:[1,0]',
        f'v_rcp_f32 {v(t + 6)}, {v(t + 4)}', f'v_rcp_f32 {v(t + 7)}, {v(t + 5)}',
        f'v_pk_mul_f32 {v(t + 6, 2)}, {v(t + 6, 2)}, {v(t, 2)}',
        f'v_cvt_pk_bf16_f32 {v(dst)}, {v(t + 6)}, {v(t + 7)}']


def zipn(*ls):
    out = []
    for grp in zip(*ls):
        out += list(grp)
    return out


def tab_reads(us):
    return [f'ds_read_b128 {v(vCB + 8 * w_ + 4 * k, 4)}, {v(vG16)} offset:{1024 * w_ + 64 * u}' for k, u in enumerate(us) for w_ in range(2)]


groups = [('odd', 0)] + [(p, tt) for p in range(3) for tt in range(2)]
E(tab_reads([6]))
pend = []
for gi, (p, tt) in enumerate(groups):
    dst = po[gi % 3]
    if p == 'odd':
        ch = [gelu_chain(acc1(6, c >> 1) + 2 * (c & 1), vCB + 2 * (c & 1), vCB + 8 + 2 * (c & 1), c >> 1, dst + c, c) for c in range(4)]
        st_ = [I(f'buffer_store_dwordx2 {v(dst, 2)}, {v(vL8)}, {s(rWS, 4)}, {s(sOH)} offen offset:3072 sc1'),
               I(f'buffer_store_dwordx2 {v(dst + 2, 2)}, {v(vL8)}, {s(rWS, 4)}, {s(sOY)} offen offset:3072 sc1')]
    else:
        ch = [gelu_chain(acc1(2 * p + (c >> 1), tt) + 2 * (c & 1), vCB + 2 * c, vCB + 8 + 2 * c, tt, dst + c, c) for c in range(4)]
        st_ = [I(f'buffer_store_dwordx4 {v(dst, 4)}, {v(vL16)}, {s(rWS, 4)}, {s(sOH if tt == 0 else sOY)} offen offset:{1024 * p} sc1', tok=f'hst{gi}')]
    z = zipn(*ch)
    E(z[:4])
    E(pend)
    if gi + 1 < len(groups) and groups[gi + 1][0] != p:
        np_ = groups[gi + 1][0]
        E(tab_reads([2 * np_, 2 * np_ + 1]))
    E(z[4:])
    pend = st_
E(pend)
E(stamp('gelu'))
E('s_barrier')
E(stamp('b5'))
E(T2(0, 0, False))
E(I(f'buffer_store_dwordx2 {v(vN, 2)}, {v(vFL)}, {s(rWS, 4)}, {s(sFH)} offen sc1', after=['hst6']))
E(stamp('hflag'))
E(T2(1, 1, False), T2(2, 2, False))
E([f'v_add_u32 {v(44 + t_)}, {L_SA4 - L_SA}, {v(vB + t_)}' for t_ in range(4)], hpoll_addr())
E(T2(3, 0, False, ad=44))
E(D2(4, 0, after=['w2t_0_7']), D2(5, 1, after=['w2t_1_7']), D2(6, 2, after=['w2t_2_7']))
E(POLL_LD, T2(4, 0), T2(5, 1), T2(6, 2))
E(stamp('w2'))
E(poll_check('h', POLL_CMP, POLL_LD))
E(stamp('hpoll'))
E(h_loads(0), h_loads(1))
E('s_setprio 0')
E(stamp('hiss'))
gemm2([])

B = cur = Prog('B')
B.names = list(P.names)
vWF, vC, vG, vF, vHO = 20, 27, 30, 34, 35
vT = 36
aSEL, aCF, aCS = 48, 76, 104
vK0, vK1, vKT, vSHA, vSH, vTW = 138, 139, 140, 141, 142, 127
E('LB:')
E(f's_sub_u32 {s(rW1)}, {s(pW1)}, 4096', f's_subb_u32 {s(rW1 + 1)}, {s(pW1 + 1)}, 0', f's_and_b32 {s(rW1 + 1)}, {s(rW1 + 1)}, 0xffff',
  f's_mov_b32 {s(rW1 + 2)}, {512 * 3584 + 4096}', f's_mov_b32 {s(rW1 + 3)}, 0x20000',
  f'v_min_u32 {v(t0)}, 13, v0', f'v_lshlrev_b32 {v(vTW)}, 7, {v(t0)}',
  )


E(f's_mul_i32 {s(sT)}, {s(sFS)}, 224', f's_add_u32 {s(sT)}, {s(sT)}, 4096',
  f's_lshl_b32 {s(sT2)}, {s(sTH)}, 5', f's_add_u32 {s(sT2)}, {s(sT)}, {s(sT2)}',
  f's_movk_i32 {s(sOW2)}, 3584',
  f'v_lshrrev_b32 {v(t0)}, 2, v0', f'v_mul_u32_u24 {v(t0)}, {s(sOW2)}, {v(t0)}',
  f'v_lshrrev_b32 {v(t1)}, 5, v0', f'v_lshlrev_b32 {v(t2)}, 1, {v(t1)}', f'v_xor_b32 {v(t2)}, {v(tC4)}, {v(t2)}',
  f'v_lshl_add_u32 {v(t0)}, {v(t2)}, 4, {v(t0)}',
  f'v_add_u32 {v(vWF)}, {s(sT2)}, {v(t0)}')
for i in range(1, 6):
    sec, hh = i >> 1, i & 1
    d = 64 * sec + 57344 * hh - 1024 * (i & 3)
    E(f'v_add_u32 {v(vWF + i)}, {d & 0xffffffff}, {v(vWF)}')
E(f's_cmp_eq_u32 {s(sTH)}, 0', f's_cselect_b32 {s(sT2)}, 192, 0', f's_add_u32 {s(sT2)}, {s(sT)}, {s(sT2)}',
  f's_sub_u32 {s(sT2)}, {s(sT2)}, 2048',
  f'v_bfe_u32 {v(t0)}, v0, 2, 3', f'v_lshl_add_u32 {v(t0)}, {v(t1)}, 4, {v(t0)}',
  f'v_bfe_u32 {v(t1)}, v0, 1, 1', f'v_lshl_add_u32 {v(t0)}, {v(t1)}, 3, {v(t0)}',
  f'v_mul_u32_u24 {v(t0)}, {s(sOW2)}, {v(t0)}',
  f'v_and_b32 {v(t1)}, 1, v0', f'v_lshl_add_u32 {v(t0)}, {v(t1)}, 4, {v(t0)}',
  f'v_add_u32 {v(vWF + 6)}, {s(sT2)}, {v(t0)}',
  f's_mul_i32 {s(sLW1)}, {s(sW)}, 7168', f's_mul_i32 {s(sW1W)}, {s(sW)}, {32 * 3584}')


def w1_dma(st, after=()):
    base = st * 28672
    out = [f's_add_u32 m0, {s(sLW1)}, {base}', f's_add_u32 {s(sOW1)}, {s(sW1W)}, {st * 4 * 32 * 3584}']
    for i in range(7):
        if i == 4:
            out.append(f's_add_u32 m0, {s(sLW1)}, {base + 4096}')
        out.append(I(f'buffer_load_dwordx4 {v(vWF + i)}, {s(rW1, 4)}, {s(sOW1)} offen offset:{1024 * (i & 3)} lds', tok=f'w1_{st}_{i}',
                     after=(after if i == 0 else ())))
    return flat(out)


W0 = w1_dma(0)
E(W0[:6])
E(stamp('first'))
hreg, he, b1r, b1f = 40, 52, 120, 64
vB1A, vXL, vXW = 122, 123, 124
E(srd(rX, pQ, 0x200000), srd(rK, pK, 0x200000), srd(rV, pV, 0x200000),
  f's_movk_i32 {s(sC8K)}, 0x2000',
  f's_lshl_b32 {s(sT)}, {s(sWI)}, 14', f's_lshl_b32 {s(sT2)}, {s(sXCD)}, 7', f's_add_u32 {s(sT)}, {s(sT)}, {s(sT2)}',
  f'v_lshl_add_u32 {v(t0)}, {v(tL3)}, 10, {s(sT)}', f'v_lshl_add_u32 {v(vK1)}, {v(tL7)}, 4, {v(t0)}',
  f'v_subrev_u32 {v(vK0)}, {s(sC8K)}, {v(vK1)}',
  f's_lshl_b32 {s(sT2)}, {s(sXCD)}, 9', f'v_add_u32 {v(vSHA)}, {s(sT2)}, {v(vL8)}',
  f's_add_u32 {s(sBLK)}, {s(sLW1)}, {L_KVS}',
  f's_lshl4_add_u32 {s(sT)}, {s(sTB)}, {s(sFS)}', f's_lshl2_add_u32 {s(sT)}, {s(sT)}, {s(sW)}',
  f's_lshl_b32 {s(sOST)}, {s(sT)}, 5', f's_add_u32 {s(sOST)}, {s(sOST)}, {WS_STAT}')
dbg_srd(False)
E(f'v_and_b32 {v(tL15)}, 15, v0', f'v_bfe_u32 {v(tR4)}, v0, 2, 2')
E(f'v_lshlrev_b32 {v(t0)}, 7, {v(tR4)}', f'v_lshl_add_u32 {v(t0)}, {v(tG)}, 5, {v(t0)}',
  f'v_lshl_add_u32 {v(t0)}, {v(tC4)}, 3, {v(t0)}', f'v_add_u32 {v(vKT)}, {s(sBLK)}, {v(t0)}',
  )
E(
  f's_lshl_b32 {s(sT2)}, {s(sXCD)}, 7', f's_add_u32 {s(sT2)}, {s(sT2)}, {s(sWI)}',
  f's_andn2_b32 {s(sCNT)}, {s(sT2)}, 3', f's_load_dword {s(sD)}, {s(pD, 2)}, {s(sCNT)}',
  f's_lshl_b32 {s(sOY)}, {s(sCNT)}, 12', f's_lshl_b32 {s(sT)}, {s(sW)}, 11', f's_add_u32 {s(sOY)}, {s(sOY)}, {s(sT)}',
  f's_add_u32 {s(sOY)}, {s(sOY)}, {WS_Y}',
  f's_lshr_b32 {s(sT2)}, {s(sT2)}, 1', f's_lshl_b32 {s(sT2)}, {s(sT2)}, 12',
  f's_add_u32 {s(rHS)}, {s(pHS)}, {s(sT2)}', f's_addc_u32 {s(rHS + 1)}, {s(pHS + 1)}, 0',
  f's_and_b32 {s(rHS + 1)}, {s(rHS + 1)}, 0xffff', f's_movk_i32 {s(rHS + 2)}, 0x1000', f's_mov_b32 {s(rHS + 3)}, 0x20000',
  f's_and_b32 {s(sCNT)}, {s(sW)}, 1', f's_lshl_b32 {s(sT)}, {s(sCNT)}, 11', f'v_add_u32 {v(vHO)}, {s(sT)}, {v(vL16)}',
  f's_lshr_b32 {s(sT)}, {s(sW)}, 1', f's_mul_i32 {s(sXB)}, {s(sT)}, 8320', f's_mul_i32 {s(sOH)}, {s(sT)}, 4608',
  f's_lshl_b32 {s(sCNT)}, {s(sCNT)}, 8',
  f's_add_u32 {s(sT2)}, {s(sXB)}, {s(sCNT)}', f's_add_u32 {s(sT2)}, {s(sT2)}, {L_HC + 4}',
  f'v_and_b32 {v(t2)}, 1, v0', f'v_mul_u32_u24 {v(t0)}, 4160, {v(t2)}',
  f'v_lshrrev_b32 {v(t1)}, 1, {v(tL15)}', f'v_lshl_add_u32 {v(t0)}, {v(t1)}, 2, {v(t0)}',
  f'v_lshl_add_u32 {v(t0)}, {v(tG)}, 4, {v(t0)}', f'v_add_u32 {v(vG)}, {s(sT2)}, {v(t0)}',
  [f'v_add_u32 {v(vG + k)}, {1024 * k}, {v(vG)}' for k in range(1, 4)],
  f's_add_u32 {s(sT2)}, {s(sOH)}, {s(sCNT)}', f's_add_u32 {s(sT2)}, {s(sT2)}, {L_XR + 480}',
  f'v_lshlrev_b32 {v(t0)}, 4, {v(tG)}', f'v_lshlrev_b32 {v(t1)}, 5, {v(tL15)}', f'v_sub_u32 {v(t0)}, {v(t0)}, {v(t1)}',
  f'v_add_u32 {v(vF)}, {s(sT2)}, {v(t0)}',
  f's_lshl_b32 {s(sT)}, {s(sCNT)}, 3', f's_add_u32 {s(sT)}, {s(sT)}, {s(sOH)}', f's_add_u32 {s(sT)}, {s(sT)}, {L_XR}',
  f'v_add_u32 {v(vXW)}, {s(sT)}, {v(vL8)}',
  f's_sub_u32 {s(sT)}, 3, {s(sW)}', f's_lshl_b32 {s(sT)}, {s(sT)}, 1',
  f'v_xor_b32 {v(t0)}, {s(sT)}, {v(tL7)}', f'v_lshlrev_b32 {v(t0)}, 4, {v(t0)}', f'v_lshl_add_u32 {v(vXL)}, v0, 7, {v(t0)}',
  f'v_lshrrev_b32 {v(t0)}, 1, {v(tL15)}', f'v_xor_b32 {v(t0)}, {v(t0)}, {v(tG)}', f'v_lshlrev_b32 {v(t0)}, 4, {v(t0)}',
  f'v_lshl_add_u32 {v(t0)}, {v(t2)}, 3, {v(t0)}', f'v_lshl_add_u32 {v(t0)}, {v(tG)}, 7, {v(t0)}',
  f's_lshl_b32 {s(sT)}, {s(sW)}, 11', f'v_add_u32 {v(126)}, {s(sT)}, {v(t0)}',
  f'v_lshlrev_b32 {v(t0)}, 4, {v(tL15)}', f'v_lshl_add_u32 {v(115)}, {v(tG)}, 13, {v(t0)}',
  f's_mul_i32 {s(sT)}, {s(sFS)}, 224', f's_lshl_b32 {s(sT2)}, {s(sTH)}, 5', f's_add_u32 {s(sT2)}, {s(sT2)}, {s(sT)}',
  f'v_lshl_add_u32 {v(t0)}, {v(tL15)}, 5, {s(sT2)}',
  f's_cmp_eq_u32 {s(sTH)}, 0', f's_cselect_b32 {s(sT2)}, 192, 0', f's_add_u32 {s(sT2)}, {s(sT2)}, {s(sT)}',
  f'v_cmp_gt_u32 vcc, 6, {v(tL15)}', f'v_mov_b32 {v(t1)}, {s(sT2)}', 's_nop 0',
  f'v_cndmask_b32 {v(t0)}, {v(t1)}, {v(t0)}, vcc', f'v_lshl_add_u32 {v(vB1A)}, {v(tG)}, 3, {v(t0)}',
  f'v_and_b32 {v(t0)}, 31, v0', f'v_cmp_eq_u32 vcc, 0, {v(t0)}', f'v_lshrrev_b32 {v(t0)}, 1, v0', f'v_mov_b32 {v(t1)}, 0x80000000',
  f'v_cndmask_b32 {v(t3)}, {v(t1)}, {v(t0)}, vcc',
  f's_lshl_b32 {s(sT)}, {s(sTCH)}, 7', f's_add_u32 {s(sT)}, {s(sT)}, {s(sWI)}',
  f's_mul_i32 {s(sOX)}, {s(sT)}, 3584', f's_mul_i32 {s(sT2)}, {s(sFHF)}, 1792', f's_add_u32 {s(sOX)}, {s(sOX)}, {s(sT2)}',
  f's_add_u32 {s(sOX)}, {s(sOX)}, 4096', f's_mul_i32 {s(sT)}, {s(sT)}, 14',
  f'v_min_u32 {v(t0)}, 13, v0', f'v_add_u32 {v(t0)}, {s(sT)}, {v(t0)}',
  f'v_lshrrev_b32 {v(t1)}, 2, {v(t0)}', f'v_and_b32 {v(t0)}, 3, {v(t0)}', f'v_lshlrev_b32 {v(t0)}, 7, {v(t0)}',
  f's_lshl_b32 {s(sT)}, {s(sFHF)}, 9', f'v_lshl_add_u32 {v(t0)}, {v(t1)}, 10, {v(t0)}', f'v_add_u32 {v(125)}, {s(sT)}, {v(t0)}')
E(stamp('setup1'))
E(W0[6:], f'buffer_load_dword {v(vDUM)}, {v(vTW)}, {s(rW1, 4)}, {s(sOX)} offen')
E(f's_mov_b32 m0, {s(sBLK)}', f'v_add_u32 {v(vT)}, {s(sBLK)}, {v(vL8)}',
  I(f'buffer_load_dwordx4 {v(vK0)}, {s(rK, 4)}, 0 offen lds'),
  f's_add_u32 m0, {s(sBLK)}, 1024', NONCE_LD,
  I(f'buffer_load_dwordx4 {v(vK1)}, {s(rK, 4)}, 0 offen lds'),
  f's_add_u32 m0, {s(sBLK)}, 2048', f'global_load_dwordx2 {v(vSH, 2)}, {v(vSHA)}, {s(pSH, 2)}',
  I(f'buffer_load_dwordx4 {v(vK1)}, {s(rK, 4)}, {s(sC8K)} offen lds'),
  f's_add_u32 m0, {s(sBLK)}, 3072', 's_nop 0',
  I(f'buffer_load_dwordx4 {v(vK1)}, {s(rV, 4)}, 0 offen lds'),
  f's_add_u32 m0, {s(sBLK)}, 4096', 's_nop 0',
  I(f'buffer_load_dwordx4 {v(vK1)}, {s(rV, 4)}, {s(sC8K)} offen lds', tok='kv4'))
E(w1_dma(1))
E(stamp('setup'))
E(I('s_nop 0', after=['w1_0_6']), 's_barrier')
E(stamp('b0'), 's_setprio 2')


def grab(fn):
    save = cur.p
    cur.p = []
    fn()
    got = cur.p
    cur.p = save
    items = []
    for i in got:
        if items and 'scc' in i.rd:
            items[-1].append(i)
        else:
            items.append([i])
    return items


def vm_items(lst):
    out, curr = [], []
    for i in flat(lst):
        curr.append(i)
        if i.kind.startswith('vm_'):
            out.append(curr)
            curr = []
    if curr:
        out.append(curr)
    return out


def thr(n):
    return f's_waitcnt vmcnt({n})'


kq, vq, kf, sf, kvv, vu, kvp, rec = 40, 50, 60, 80, 84, 100, 104, 116
E(I(f'ds_read_b64 {v(rec, 2)}, {v(vT)} offset:5120', tok='recr'))
for q_ in range(5):
    E(I(f'ds_read_b64_tr_b16 {v(kq + 2 * q_, 2)}, {v(vKT)} offset:{(4 + 4 * q_) * 128}', after=['kv4']))
for q_ in range(4):
    E(I(f'ds_read_b64_tr_b16 {v(vq + 2 * q_, 2)}, {v(vKT)} offset:{3072 + 512 * q_}', tok=f'kvr{q_}'))
alu = each(f'v_lshlrev_b32 {v(sf)}, 16, {v(vSH)}', f'v_and_b32 {v(sf + 1)}, 0xffff0000, {v(vSH)}',
           f'v_lshlrev_b32 {v(sf + 2)}, 16, {v(vSH + 1)}', f'v_and_b32 {v(sf + 3)}, 0xffff0000, {v(vSH + 1)}')
for i in range(10):
    if i > 0:
        alu += each(f'v_lshlrev_b32 {v(kf + 2 * i)}, 16, {v(kq + i)}')
    alu += each(f'v_and_b32 {v(kf + 2 * i + 1)}, 0xffff0000, {v(kq + i)}')
alu += each([f'v_mul_f32 {v(kvv + t)}, {v(kf + t + 1)}, {v(sf + 3)}' for t in range(16)])
for j in (2, 1, 0):
    alu += each([f'v_fmac_f32 {v(kvv + t)}, {v(kf + t + 4 - j)}, {v(sf + j)}' for t in range(16)])
E(interleave(alu, vm_items(w1_dma(2))))
E(stamp('sl0'))
E(I('s_nop 0', after=['w1_1_6']), 's_barrier')
E(stamp('b1'))
alu = []
for i in range(8):
    alu += each(f'v_lshlrev_b32 {v(vu)}, 16, {v(vq + i)}', f'v_and_b32 {v(vu + 1)}, 0xffff0000, {v(vq + i)}',
                f'v_mul_f32 {v(kvv + 2 * i)}, {v(kvv + 2 * i)}, {v(vu)}', f'v_mul_f32 {v(kvv + 2 * i + 1)}, {v(kvv + 2 * i + 1)}, {v(vu + 1)}')
alu += each([f'v_cvt_pk_bf16_f32 {v(kvp + d)}, {v(kvv + 15 - 2 * d)}, {v(kvv + 14 - 2 * d)}' for d in range(8)])
alu += grab(common_setup)
E(interleave(alu, vm_items(w1_dma(3, after=['kvr3']))))
E(NONCE_CHK(), f'v_mov_b32 {v(rec + 2)}, {v(vN)}', f'v_mov_b32 {v(rec + 3)}, {v(vN + 1)}',
  f'buffer_store_dwordx4 {v(rec, 4)}, {v(t3)}, {s(rWS, 4)}, {s(sOST)} offen sc1',
  f'buffer_load_dword {v(vDUM)}, {v(125)}, {s(rW2, 4)}, 0 offen')
E(stamp('sl1'))
E(I('s_nop 0', after=['w1_2_6']), 's_barrier')
E(stamp('b2'))
b1f = 76
kbo = 60
E(f'v_xor_b32 {v(97)}, 16, {v(vXL)}',
  f'ds_write_b128 {v(vXL)}, {v(kvp, 4)} offset:{L_KB}', I(f'ds_write_b128 {v(97)}, {v(kvp + 4, 4)} offset:{L_KB}', tok='kbw'),
  f'v_subrev_u32 {v(98)}, 4, {v(vHO)}', f'v_add_u32 {v(99)}, 1020, {v(vHO)}')
vCXW, vKXA = 36, 37
alu = each([f'v_mov_b32 {v(kbo + 4 * i + 2 + e)}, {v(vN + e)}' for i in range(4) for e in range(2)],
           f'v_xor_b32 {v(114)}, 64, {v(126)}',
           f's_lshl2_add_u32 {s(sOKS)}, {s(sXCD)}, {s(sW)}', f's_lshl_b32 {s(sOKS)}, {s(sOKS)}, 17', f's_lshl_b32 {s(sT2)}, {s(sLOC)}, 8',
           f's_sub_u32 {s(sOKS)}, {s(sOKS)}, {s(sT2)}', f's_add_u32 {s(sOKS)}, {s(sOKS)}, {WS_KVT + 496 * 16}',
           f'v_lshlrev_b32 {v(t0)}, 4, {v(tG)}', f'v_lshl_add_u32 {v(t0)}, {v(tL15)}, 6, {v(t0)}', f'v_add_u32 {v(113)}, {L_CS + 4096}, {v(t0)}',
           f'v_add_u32 {v(112)}, {L_CS}, {v(vL16)}',
           f's_add_u32 {s(sCNT)}, {s(sXB)}, {L_HC + 32}', f'v_add_u32 {v(100)}, {s(sCNT)}, {v(vHO)}',
           f'v_mov_b32 {v(82)}, 0', f'v_mov_b32 {v(83)}, 0',
           f's_add_u32 {s(sCNT)}, {s(sOH)}, {L_XR + 4096}', f'v_add_u32 {v(101)}, {s(sCNT)}, {v(vL8)}',
           f's_mul_i32 {s(sCNT)}, {s(sW)}, 4160', f's_add_u32 {s(sCNT)}, {s(sCNT)}, {L_HC}',
           f'v_and_b32 {v(102)}, 24, {v(vL8)}', f'v_add_u32 {v(102)}, {s(sCNT)}, {v(102)}',
           f's_lshl_b32 {s(sOKV)}, {s(sXCD)}, 7', f's_add_u32 {s(sOKV)}, {s(sOKV)}, {s(sWI)}', f's_lshl_b32 {s(sOKV)}, {s(sOKV)}, 12',
           f's_add_u32 {s(sOKV)}, {s(sOKV)}, {WS_KVT}',
           f's_and_b32 {s(sD + 1)}, {s(sD)}, 0xffff0000', f's_lshl_b32 {s(sD)}, {s(sD)}, 16',
           f'v_lshl_add_u32 {v(vCXW)}, {v(tG)}, 6, {v(vL16)}', f'v_add_u32 {v(vCXW)}, {s(sRB)}, {v(vCXW)}',
           f's_lshl_b32 {s(sT)}, {s(sW)}, 10', f's_sub_u32 {s(sT)}, {L_XR + 4088 - 512}, {s(sT)}',
           f'v_sub_u32 {v(vKXA)}, {s(sT)}, {v(vL8)}',
           f'v_mul_u32_u24 {v(t0)}, 320, {v(tC4)}', f'v_lshrrev_b32 {v(t1)}, 2, v0', f'v_lshl_add_u32 {v(t0)}, {v(t1)}, 4, {v(t0)}')
for i in range(2):
    alu += each(f's_lshl1_add_u32 {s(sT)}, {s(sW)}, {i}', f's_mul_i32 {s(sCNT)}, {s(sT)}, 11', f's_lshr_b32 {s(sCNT)}, {s(sCNT)}, 5',
                f's_mul_i32 {s(sCNT)}, {s(sCNT)}, {16384 - 3840}', f's_mul_i32 {s(sT)}, {s(sT)}, 1280', f's_add_u32 {s(sT)}, {s(sT)}, {s(sCNT)}',
                f'v_add_u32 {v(vT + 2 + i)}, {s(sT)}, {v(t0)}')
alu += hpoll_addr()
E(interleave(alu, each(f'global_load_dwordx2 {v(b1r, 2)}, {v(vB1A)}, {s(pB1, 2)}',
                       f'buffer_load_dwordx4 {v(hreg, 4)}, {v(vHO)}, {s(rHS, 4)}, 0 offen',
                       f'buffer_load_dwordx4 {v(hreg + 4, 4)}, {v(vHO)}, {s(rHS, 4)}, 0 offen offset:1024',
                       f'buffer_load_dword {v(hreg + 8)}, {v(98)}, {s(rHS, 4)}, 0 offen',
                       f'buffer_load_dword {v(hreg + 9)}, {v(99)}, {s(rHS, 4)}, 0 offen') + D2(0, 0)))
E(stamp('sl2'))
E(I('s_nop 0', after=['w1_3_6', 'kbw']), 's_barrier')
E(stamp('b3'))
E([f'ds_read_b64 {v(kbo + 4 * i, 2)}, {v(126 if i % 2 == 0 else 114)} offset:{L_KB + 512 * i}' for i in range(4)])
alu = each(f'v_lshlrev_b32 {v(b1f)}, 16, {v(b1r)}', f'v_and_b32 {v(b1f + 1)}, 0xffff0000, {v(b1r)}',
           f'v_lshlrev_b32 {v(b1f + 2)}, 16, {v(b1r + 1)}', f'v_and_b32 {v(b1f + 3)}, 0xffff0000, {v(b1r + 1)}')
for b in range(2):
    src = hreg + 4 * b
    alu += each(f'v_alignbit_b32 {v(he + 4 * b)}, {v(src)}, {v(hreg + 8 + b)}, 16',
                [f'v_alignbit_b32 {v(he + 4 * b + i)}, {v(src + i)}, {v(src + i - 1)}, 16' for i in range(1, 4)])
E(interleave(alu, [flat([f'buffer_store_dwordx4 {v(kbo + 4 * i, 4)}, {v(115)}, {s(rWS, 4)}, {s(sOKS)} offen sc1',
                         f's_add_u32 {s(sOKS)}, {s(sOKS)}, 0x8000']) for i in range(4)]))
E(f'ds_write_b128 {v(113)}, {v(b1f, 4)} offset:1024', thr(8), D2(3, 3, forA=True), thr(8), D2(2, 2))
E('s_barrier')
cx = 84
E([f'ds_read_b128 {v(cx + 4 * w_, 4)}, {v(112)} offset:{1024 * w_}' for w_ in range(4)])
E(interleave(each([f'v_add_f32 {v(cx + i)}, {v(cx + i)}, {v(cx + 4 + i)}' for i in range(4)],
                  [f'v_add_f32 {v(cx + 8 + i)}, {v(cx + 8 + i)}, {v(cx + 12 + i)}' for i in range(4)],
                  [f'v_add_f32 {v(cx + i)}, {v(cx + i)}, {v(cx + 8 + i)}' for i in range(4)]), D2(1, 1)[:2]),
  I(f'ds_write_b128 {v(113)}, {v(cx, 4)}', tok='tabw'), D2(1, 1)[2:])
E(stamp('sl3'))
E(I('s_barrier', after=['tabw']))
E(stamp('b4'))
xr = 60
XR_LD = [f'buffer_load_dwordx4 {v(xr + 4 * i, 4)}, {v(vL16)}, {s(rWS, 4)}, {s(sOKV)} offen offset:{1024 * i} sc1' for i in range(4)]
XR_CMP = [f'v_cmp_ne_u64 vcc, {s(sN, 2)}, {v(xr + 2, 2)}']
for i in range(1, 4):
    XR_CMP += [f'v_cmp_ne_u64 {s(sM2, 2)}, {s(sN, 2)}, {v(xr + 4 * i + 2, 2)}', f's_or_b64 vcc, vcc, {s(sM2, 2)}']
TH = 9


def paced(items):
    out = []
    for it in items:
        out += [thr(TH)] + it
    return out


E(mix(each(XR_LD) + D2(0, 0, forA=True)[:2],
      each(f'ds_write_b128 {v(100)}, {v(he, 4)}', f'ds_write_b128 {v(100)}, {v(he + 4, 4)} offset:1024',
           f'ds_write_b128 {v(100)}, {v(hreg, 4)} offset:4160', f'ds_write_b128 {v(100)}, {v(hreg + 4, 4)} offset:{4160 + 1024}',
           f'ds_write_b64 {v(101)}, {v(82, 2)}', f'ds_write_b64 {v(102)}, {v(82, 2)}')))
E(mix(D2(0, 0, forA=True)[2:] + D2(1, 1, forA=True) + D2(2, 2, forA=True), T2(0, 0) + T2(2, 2) + T2(1, 1)))
E(poll_check('kv', XR_CMP, XR_LD))
E([I(f'ds_write_b64 {v(vXW)}, {v(xr + 4 * i, 2)} offset:{512 * i}', tok=f'xrw{i}') for i in range(4)])
E(stamp('sl4'))
E(I('s_barrier', after=['xrw3', 'w2a_2_3']))
E(stamp('b5'))

cacc = 40


def gf(cl, i, isF, k):
    n = (32 if isF else 0) + 4 * i
    return v(72 + n, k) if cl & 1 == 0 else a(48 + n, k)


def gf2(cl, i, half):
    n = 4 * i + 2 * half
    return v(72 + n, 2) if cl & 1 == 0 else a(48 + n, 2)


def conv_reads(cl):
    out = []
    for i in range(8):
        o = 16 * cl + 128 * (i & 1)
        out.append([I(f'ds_read2_b32 {gf2(cl, i, 0)}, {v(vG + (i >> 1))} offset0:{o} offset1:{o + 1}')])
        out.append([I(f'ds_read2_b32 {gf2(cl, i, 1)}, {v(vG + (i >> 1))} offset0:{o + 2} offset1:{o + 3}')])
        out.append([I(f'ds_read_b128 {gf(cl, i, True, 4)}, {v(vF)} offset:{3584 - 512 * i + 64 * cl}', tok=f'cr_{cl}_{i}')])
    return out


def conv_mfma(cl):
    out = []
    seen = set()
    pairs = sorted([(x, y) for x in range(8) for y in range(8) if x + y <= 7], key=lambda t: (max(t), t[0] + t[1]))
    for n, (x, y) in enumerate(pairs):
        d = v(cacc + 4 * (x + y), 4)
        c = d
        if cl == 0 and (x + y) not in seen:
            c = '0'
            seen.add(x + y)
        aft = [f'cr_{cl}_7'] if (cl > 0 and n == 0) else []
        out.append([I(f'v_mfma_f32_16x16x32_bf16 {d}, {gf(cl, x, False, 4)}, {gf(cl, y, True, 4)}, {c}', after=aft)])
    return out


kx, ku = 136, 20
kx_reads = each([f'ds_read_b64 {v(kx + 4 * i + 2 * ch, 2)}, {v(vKXA)} offset:{512 * (1 - i) + 4608 * ch}' for i in range(2) for ch in range(2)])
kx_unp = []
for i in range(2):
    for ch in range(2):
        k = kx + 4 * i + 2 * ch
        u = ku + 8 * i + 4 * ch
        kx_unp += each(f'v_and_b32 {v(u)}, 0xffff0000, {v(k + 1)}', f'v_lshlrev_b32 {v(u + 1)}, 16, {v(k + 1)}',
                       f'v_and_b32 {v(u + 2)}, 0xffff0000, {v(k)}', f'v_lshlrev_b32 {v(u + 3)}, 16, {v(k)}',
                       [f'v_mul_f32 {v(u + e)}, {s(sD + ch)}, {v(u + e)}' for e in range(4)])
E(conv_reads(0))
for cl in range(4):
    sd = conv_reads(cl + 1) if cl < 3 else []
    m = interleave(conv_mfma(cl), sd, end=28)
    extra = {0: lambda: D2(3, 3) + D2(4, 0), 1: lambda: D2(5, 1) + D2(6, 2), 2: lambda: kx_reads + [[I(POLL_LD)]],
             3: lambda: kx_unp + [poll_check('h', POLL_CMP, POLL_LD)] + h_loads(0)}[cl]()
    E(interleave(m, extra))
E(stamp('conv'))
E(mix(T2(4, 0) + T2(5, 1) + T2(6, 2) + T2(3, 3), h_loads(1)))
for cb_ in range(8):
    E(I(f'ds_write_b128 {v(vCXW)}, {v(cacc + 4 * cb_, 4)} offset:{16384 * (cb_ // 3) + 1280 * (cb_ % 3)}', after=['w2t_6_7'] if cb_ == 0 else []))
E('s_waitcnt lgkmcnt(0)', 's_barrier')
E(stamp('b6'))
cr = 40
for i in range(2):
    for sw in range(4):
        E(f'ds_read_b128 {v(cr + 16 * i + 4 * sw, 4)}, {v(vT + 2 + i)} offset:{sw * 4096}')
yo = 128
E([f'v_mov_b32 {v(yo + 4 * n + 2 + e)}, {v(vN + e)}' for n in range(4) for e in range(2)], f's_add_u32 {s(sT)}, {s(sOY)}, 8192')
for i in range(2):
    for ch in range(2):
        A_, B_ = cr + 16 * i + 8 * ch, cr + 16 * i + 8 * ch + 4
        u = ku + 8 * i + 4 * ch
        y_ = yo + 8 * i + 4 * ch
        E([f'v_add_f32 {v(A_ + e)}, {v(A_ + e)}, {v(u + e)}' for e in range(4)],
          [f'v_add_f32 {v(A_ + e)}, {v(A_ + e)}, {v(B_ + e)}' for e in range(4)],
          f'v_cvt_pk_bf16_f32 {v(y_)}, {v(A_)}, {v(A_ + 1)}',
          f'v_cvt_pk_bf16_f32 {v(y_ + 1)}, {v(A_ + 2)}, {v(A_ + 3)}',
          f'buffer_store_dwordx4 {v(y_, 4)}, {v(vL16)}, {s(rWS, 4)}, {s(sT if ch else sOY)} offen offset:{1024 * i} sc1')
E(stamp('cepi'))
E('s_setprio 0')
gemm2([])

assert sum(i.kind == 'barrier' for i in A.p) == sum(i.kind == 'barrier' for i in B.p), 'barrier mismatch'


def finish(pr, prefix):
    prog = list(prefix) + pr.p
    for arg in sys.argv:
        if arg.startswith('--drop='):
            rx = _re.compile(arg[7:])
            gone = set(i.tok for i in prog if rx.search(i.text + ' #' + str(i.tok)))
            prog = [i for i in prog if not rx.search(i.text + ' #' + str(i.tok))]
            for i in prog:
                i.after = tuple(x for x in i.after if x not in gone)
    m, est_ = schedule_mfma(merge_waits(insert_waits(prog)))
    m = insert_nops(merge_waits(m))
    c = Counter(i.kind for i in m)
    print(pr.tag, 'est', est_, dict(c), 'nops', sum(int(i.text.split()[1]) + 1 for i in m if i.kind == 'nop'))
    return m


mA = finish(A, P.p)
mB = finish(B, P.p)
kB = [i for i, x in enumerate(mB) if x.text == 'LB:'][0]
mB = mB[kB:]

HEADER = open('cdna_kernels/%s.s.ref' % NAME).read().split('; Override launch')[0]
out = HEADER
out += f'; @launch grid=(256,1,1) block=(512,1,1) lds={LDS_BYTES}\n'
if STAMPS:
    out += '; STAMPS ' + ' '.join(A.names) + '\n; STAMPS ' + ' '.join(B.names) + '\n'
out += f'''.amdgcn_target "amdgcn-amd-amdhsa--gfx950"
.text
.globl {NAME}_kernel
.p2align 8
.type {NAME}_kernel,@function
{NAME}_kernel:
'''
out += emit(mA) + '\n.p2align 6\n' + emit(mB) + '\n' + emit(insert_nops(A.tail + B.tail)) + '\nLend:\nLcode_end:\n    s_endpgm\n'
out += f'''.section .rodata,"a"
.p2align 6
.amdhsa_kernel {NAME}_kernel
  .amdhsa_next_free_vgpr 256
  .amdhsa_next_free_sgpr 102
  .amdhsa_accum_offset 144
  .amdhsa_group_segment_fixed_size 0
  .amdhsa_kernarg_size 112
  .amdhsa_user_sgpr_count 2
  .amdhsa_user_sgpr_kernarg_segment_ptr 1
  .amdhsa_system_sgpr_workgroup_id_x 1
.end_amdhsa_kernel
'''
dst = [x for x in sys.argv[1:] if not x.startswith('--')]
path = dst[0] if dst else f'cdna_kernels/{NAME}.s'
open(path, 'w').write(out)
```
